```python
import torch

def _softmax(x, axis=-1):
    return torch.softmax(x, dim=axis)

def _gelu(x):
    return torch.nn.functional.gelu(x, approximate='tanh')

def _silu(x):
    return torch.nn.functional.silu(x)

def _sigmoid(x):
    return torch.sigmoid(x)

def _layernorm(x, axis=-1, eps=1e-05):
    m = x.mean(dim=axis, keepdim=True)
    v = x.var(dim=axis, keepdim=True, unbiased=False)
    return (x - m) / torch.sqrt(v + eps)

def _scatter_add(tgt, idx, src, axis=0):
    return tgt.clone().index_add_(axis, idx, src)

def _segment_sum(src, seg, n):
    out = torch.zeros((n,) + src.shape[1:], dtype=src.dtype)
    return out.index_add_(0, seg, src)

def _pad(x, pw):
    flat = tuple((v for pair in reversed(pw) for v in pair))
    return torch.nn.functional.pad(x, flat)
kernel_name = 'adaLN_cond__memory_aug_recurrent_mem_tr__glu_gated_reglu__prompt'

def setup_inputs():

    _w = lambda a: (lambda t: t.to(torch.bfloat16) if t.is_floating_point() else t)(torch.as_tensor(a))

    def _A_setup():
        B, S, Dm = (1, 2048, 640)
        H, Dh = (32, 128)
        M, seg = (8, 32)
        seg = min(seg, S)
        S = S // seg * seg
        return {'x': _w((lambda *s: torch.randn(*s, dtype=torch.bfloat16) * 0.05)(B, S, Dm)), 'mem0': _w((lambda *s: torch.randn(*s, dtype=torch.bfloat16) * 0.8)(B, M, Dm)), 'Wq': _w((lambda *s: torch.randn(*s, dtype=torch.bfloat16) * 0.8)(Dm, H, Dh) * Dm ** (-0.5)), 'Wk': _w((lambda *s: torch.randn(*s, dtype=torch.bfloat16) * 0.8)(Dm, H, Dh) * Dm ** (-0.5)), 'Wv': _w((lambda *s: torch.randn(*s, dtype=torch.bfloat16) * 0.8)(Dm, H, Dh) * Dm ** (-0.5)), 'Wo': _w((lambda *s: torch.randn(*s, dtype=torch.bfloat16) * 0.8)(H, Dh, Dm) * (H * Dh) ** (-0.5)), 'seg_len': seg}
    _A_in = _A_setup()

    def _B_setup():
        B, S, D, F = (1, 2048, 640, 1728)
        return {'x': _w((lambda *s: torch.randn(*s, dtype=torch.bfloat16) * 0.05)(B, S, D)), 'W_gate': _w((lambda *s: torch.randn(*s, dtype=torch.bfloat16) * 0.4)(D, F) * (2.0 / D) ** 0.5), 'W_up': _w((lambda *s: torch.randn(*s, dtype=torch.bfloat16) * 0.4)(D, F) * (2.0 / D) ** 0.5), 'W_down': _w((lambda *s: torch.randn(*s, dtype=torch.bfloat16) * 0.4)(F, D) * (1.0 / F) ** 0.5)}
    _B_in = _B_setup()
    return {'A_x': _A_in['x'], 'A_mem0': _A_in['mem0'], 'A_Wq': _A_in['Wq'], 'A_Wk': _A_in['Wk'], 'A_Wv': _A_in['Wv'], 'A_Wo': _A_in['Wo'], 'A_seg_len': _A_in['seg_len'], 'B_x': _B_in['x'], 'B_W_gate': _B_in['W_gate'], 'B_W_up': _B_in['W_up'], 'B_W_down': _B_in['W_down'], 'c': _w((lambda *s: torch.randn(*s, dtype=torch.bfloat16) * 0.1)(1, 640) * 8.0), 'w_mod': _w((lambda *s: torch.randn(*s, dtype=torch.bfloat16) * 0.1)(640, 6 * 640) * 640 ** (-0.5) * 8.0)}

def reference(A_x, A_mem0, A_Wq, A_Wk, A_Wv, A_Wo, A_seg_len, B_x, B_W_gate, B_W_up, B_W_down, c, w_mod):

    def _A_ref(x, mem0, Wq, Wk, Wv, Wo, seg_len):
        B, S, Dm = x.shape
        H, Dh = (Wq.shape[1], Wq.shape[2])
        M = mem0.shape[1]
        scale = Dh ** (-0.5)
        n_seg = S // seg_len
        L = M + seg_len
        idx = torch.arange(L)
        mask = (idx[:, None] < M) | (idx[:, None] >= idx[None, :])
        mem = mem0
        outs = []
        for s in range(n_seg):
            xs = x[:, s * seg_len:(s + 1) * seg_len, :].clone()
            h = torch.concatenate([mem, xs], axis=1)
            q = torch.einsum('btd,dhe->bhte', h, Wq)
            k = torch.einsum('btd,dhe->bhte', h, Wk)
            v = torch.einsum('btd,dhe->bhte', h, Wv)
            scores = torch.einsum('bhqe,bhke->bhqk', q, k) * scale
            scores = torch.where(mask[None, None], scores, -1000000000.0)
            p = _softmax(scores, axis=-1)
            o = torch.einsum('bhqk,bhke->bhqe', p, v)
            o = torch.einsum('bhte,hed->btd', o, Wo)
            mem = o[:, :M, :].clone()
            outs.append(o[:, M:, :])
        return torch.concatenate(outs, axis=1)

    def _B_ref(x, W_gate, W_up, W_down):
        gate = torch.einsum('bsd,df->bsf', x, W_gate)
        up = torch.einsum('bsd,df->bsf', x, W_up)
        gate = gate * (lambda x, dt: x.to(dt))(gate > 0, gate.dtype)
        h = gate * up
        return torch.einsum('bsf,fd->bsd', h, W_down)
    x = A_x
    mod = (_silu(c) @ w_mod).reshape(c.shape[0], 6, 1, -1)
    sa, ca, ga, sb, cb, gb = (mod[:, 0].clone(), mod[:, 1].clone(), mod[:, 2].clone(), mod[:, 3].clone(), mod[:, 4].clone(), mod[:, 5].clone())
    h = _layernorm(x, axis=-1) * (1 + ca) + sa
    x = x + ga * _A_ref(h, A_mem0, A_Wq, A_Wk, A_Wv, A_Wo, A_seg_len)
    h = _layernorm(x, axis=-1) * (1 + cb) + sb
    x = x + gb * _B_ref(h, B_W_gate, B_W_up, B_W_down)
    return x
```

```python
import re, copy

REG_RE = re.compile(r'^(-|abs\()?([vas])(\d+)\)?$')
RNG_RE = re.compile(r'^(-)?([vas])\[(\d+):(\d+)\]$')


def regs_of(op):
    op = op.strip()
    if op.startswith('|') and op.endswith('|'):
        op = op[1:-1]
    if op.startswith('-|') and op.endswith('|'):
        op = op[2:-1]
    m = REG_RE.match(op)
    if m:
        return {(m.group(2), int(m.group(3)))}
    m = RNG_RE.match(op)
    if m:
        return {(m.group(2), i) for i in range(int(m.group(3)), int(m.group(4)) + 1)}
    if op == 'vcc':
        return {('s', 'vcc')}
    if op in ('vcc_lo', 'vcc_hi'):
        return {('s', 'vcc')}
    if op in ('exec', 'exec_lo', 'exec_hi'):
        return {('s', 'exec')}
    if op == 'm0':
        return {('s', 'm0')}
    return set()


TRANS = ('v_exp_f32', 'v_log_f32', 'v_rcp_f32', 'v_rsq_f32', 'v_sqrt_f32', 'v_sin_f32', 'v_cos_f32', 'v_rcp_iflag_f32')


class Ins:
    __slots__ = ('text', 'op', 'kind', 'rd', 'wr', 'passes', 'srcC', 'srcAB', 'dpp', 'target', 'lds_dma', 'wide_store',
                 'vm', 'lgkm', 'nop', 'label', 'stdata', 'uncond', 'raw')

    def __init__(self, text):
        self.text = text
        self.label = None
        self.raw = text.rstrip().endswith('; raw')
        self.rd = set(); self.wr = set(); self.srcC = set(); self.srcAB = set(); self.stdata = set()
        self.passes = 0; self.dpp = False; self.target = None; self.lds_dma = False; self.wide_store = False
        self.vm = None; self.lgkm = None; self.nop = 1; self.uncond = False
        t = text.split(';')[0].strip()
        if not t or t.startswith('.'):
            self.kind = 'dir'; self.op = ''; return
        if t.endswith(':'):
            self.kind = 'label'; self.label = t[:-1]; self.op = ''; return
        parts = t.split(None, 1)
        op = parts[0]; self.op = op
        rest = parts[1] if len(parts) > 1 else ''
        rest = re.sub(r'(\w+):\[([^\]]*)\]', lambda m: m.group(1) + ':' + m.group(2).replace(',', '_'), rest)
        ops = [x.strip() for x in rest.split(',')] if rest else []
        mods = ''
        if ops:
            last = ops[-1].split(None, 1)
            ops[-1] = last[0]
            mods = last[1] if len(last) > 1 else ''
        R = [regs_of(o) for o in ops]
        U = lambda l: set().union(*l) if l else set()
        if op.startswith('v_mfma') or op.startswith('v_smfmac'):
            self.kind = 'mfma'
            self.passes = 8 if '32x32' in op else (2 if '4x4' in op else 4)
            assert 'f32_16x16x4_f32' not in op and '32x32x2_f32' not in op
            self.wr = R[0]
            if op.startswith('v_smfmac'):
                self.srcC = R[0]; self.srcAB = R[1] | R[2] | R[3]
            else:
                self.srcC = R[3]; self.srcAB = R[1] | R[2]
            self.rd = self.srcC | self.srcAB
        elif op.startswith('ds_'):
            self.kind = 'ds'
            if op.startswith('ds_read') or op.startswith('ds_bpermute') or op.startswith('ds_permute') or op.startswith('ds_swizzle') or '_rtn' in op:
                self.wr = R[0]; self.rd = U(R[1:])
            else:
                self.rd = U(R)
        elif op.startswith('buffer_') or op.startswith('global_'):
            self.kind = 'vmem'
            if op in ('buffer_wbl2', 'buffer_inv'):
                pass
            elif '_load_lds' in op or re.search(r'\blds\b', mods):
                self.lds_dma = True; self.rd = U(R) | {('s', 'm0')}
            elif '_load_' in op:
                self.wr = R[0]; self.rd = U(R[1:])
            elif '_atomic_' in op:
                self.rd = U(R)
                if re.search(r'\bsc0\b', mods):
                    self.wr = R[0]
                    if op.startswith('global_'):
                        self.rd = U(R[1:])
            else:
                self.rd = U(R)
                self.stdata = R[0] if op.startswith('buffer_') else R[1]
                self.wide_store = op.endswith('x4') or op.endswith('x3')
        elif op.startswith('s_load') or op.startswith('s_buffer_load') or op in ('s_memtime', 's_memrealtime'):
            self.kind = 'smem'; self.wr = R[0]; self.rd = U(R[1:])
        elif op == 's_waitcnt':
            self.kind = 'wait'
            m = re.search(r'vmcnt\((\d+)\)', rest); self.vm = int(m.group(1)) if m else None
            m = re.search(r'lgkmcnt\((\d+)\)', rest); self.lgkm = int(m.group(1)) if m else None
        elif op == 's_nop':
            self.kind = 'nop'; self.nop = int(rest, 0) + 1
        elif op.startswith('s_cbranch') or op == 's_branch':
            self.kind = 'branch'; self.target = ops[0]; self.uncond = op == 's_branch'
            if 'vcc' in op: self.rd = {('s', 'vcc')}
        elif op == 's_endpgm':
            self.kind = 'end'
        elif op.startswith('s_'):
            self.kind = 'salu'
            if op.startswith('s_cmp') or op.startswith('s_bitcmp') or op in ('s_barrier', 's_sleep', 's_setprio', 's_setreg_b32'):
                self.rd = U(R)
            else:
                self.wr = R[0] if R else set(); self.rd = U(R[1:])
                if 'saveexec' in op: self.wr = self.wr | {('s', 'exec')}
                if op.startswith('s_addk') or op.startswith('s_mulk') or op.startswith('s_cmov'): self.rd |= R[0]
        elif op.startswith('v_'):
            self.kind = 'valu'
            self.dpp = '_dpp' in op or 'row_' in mods or 'quad_perm' in mods
            self.wr = R[0]; self.rd = U(R[1:])
            if op.startswith('v_permlane') and 'swap' in op:
                self.wr = R[0] | R[1]; self.rd = R[0] | R[1]
            elif op.startswith('v_swap'):
                self.wr = R[0] | R[1]; self.rd = R[0] | R[1]
            elif op.startswith('v_fmac') or op.startswith('v_dot2c') or op.startswith('v_writelane') or self.dpp:
                self.rd |= R[0]
            elif '_co_' in op or op.startswith('v_div_scale') or op.startswith('v_mad_u64'):
                self.wr = R[0] | R[1]; self.rd = U(R[2:])
            if op.startswith('v_cmpx'): self.wr = self.wr | {('s', 'exec')}
            if op.startswith('v_div_fmas'): self.rd |= {('s', 'vcc')}
        else:
            raise ValueError('unknown instruction: ' + text)


def vg(s):
    return {r for r in s if r[0] in 'va'}


def sg(s):
    return {r for r in s if r[0] == 's'}


PIPE_MODEL = True


class State:
    def __init__(self):
        self.vmq = []
        self.lq = []
        self.hist = []
        self.pipe = PIPE_MODEL

    def need_nops(self, i):
        need = 0
        for age, p in self.hist:
            req = 0
            if p.kind == 'valu':
                w = vg(p.wr); ws = sg(p.wr)
                if i.kind == 'mfma' and w & i.rd: req = max(req, 2)
                if i.kind == 'valu':
                    if i.dpp and w & i.rd: req = max(req, 2)
                    if i.op.startswith('v_permlane') and w & i.rd: req = max(req, 2)
                    if (i.op.startswith('v_readlane') or i.op.startswith('v_readfirstlane')) and w & i.rd: req = max(req, 1)
                    if ws & i.rd:
                        req = max(req, 4 if (i.op.startswith('v_readlane') or i.op.startswith('v_writelane') or i.op.startswith('v_div_fmas')) else 2)
                    if re.sub(r'_e(32|64)$', '', p.op) in TRANS and w & i.rd: req = max(req, 1)
                    if ('s', 'exec') in ws:
                        if i.dpp: req = max(req, 5)
                        if i.op.startswith('v_read') or i.op.startswith('v_writelane') or i.op.startswith('v_permlane'): req = max(req, 4)
                if i.kind == 'mfma' and ('s', 'exec') in ws: req = max(req, 4)
                if i.kind == 'vmem' and ws & i.rd: req = max(req, 5)
                if i.kind in ('salu', 'smem') and ws & i.rd: req = max(req, 1)
            elif p.kind == 'mfma':
                n = p.passes
                long_ = {2: 5, 4: 8, 8: 12}[n]
                if i.kind == 'mfma':
                    if p.wr & i.srcAB: req = max(req, long_)
                    if p.wr & i.srcC:
                        if p.wr == i.srcC and i.op == p.op: req = max(req, 2 if n == 2 else 0)
                        else: req = max(req, {2: 4, 4: 6, 8: 10}[n])
                    elif p.wr & i.wr:
                        req = max(req, 0 if (p.wr == i.wr and i.op == p.op) else long_)
                elif i.kind in ('valu', 'ds', 'vmem'):
                    if p.wr & (i.rd | i.wr): req = max(req, long_)
                    if i.kind == 'valu' and p.srcC & i.wr: req = max(req, {2: 1, 4: 3, 8: 7}[n])
            elif p.kind == 'vmem':
                if p.wide_store and p.stdata & i.wr: req = max(req, 2)
            elif p.kind == 'salu':
                if ('s', 'm0') in p.wr and (i.lds_dma or 'addtid' in i.op): req = max(req, 1)
            need = max(need, req - age)
        return need

    def need_wait(self, i):
        touch = i.rd | i.wr
        vm = None; lg = None
        for k, d in enumerate(self.vmq):
            hit = d & touch and not i.raw
            if hit and i.kind == 'vmem' and not (d & i.rd):
                continue
            if hit: vm = len(self.vmq) - 1 - k
        anys = any(s for _, s in self.lq)
        for k, (d, s) in enumerate(self.lq):
            hit = d & touch
            if hit and i.kind == 'ds' and not (d & i.rd) and not anys:
                continue
            if hit: lg = 0 if anys else len(self.lq) - 1 - k
        return vm, lg

    def apply(self, i):
        if i.kind in ('dir', 'label'): return
        if i.kind == 'wait':
            if i.vm is not None and len(self.vmq) > i.vm: self.vmq = self.vmq[len(self.vmq) - i.vm:]
            if i.lgkm is not None:
                if any(s for _, s in self.lq):
                    if i.lgkm == 0: self.lq = []
                elif len(self.lq) > i.lgkm: self.lq = self.lq[len(self.lq) - i.lgkm:]
        elif i.kind == 'vmem':
            if not i.text.rstrip().endswith('; nocount'): self.vmq.append(set(i.wr))
        elif i.kind == 'ds': self.lq.append((set(i.wr), False))
        elif i.kind == 'smem': self.lq.append((set(i.wr), True))
        extra = 0; upto = -1
        if i.kind == 'mfma' and self.pipe:
            for k, (age, q) in enumerate(self.hist):
                if q.kind == 'mfma':
                    upto = k; extra = max(0, q.passes - age - 1)
        for k, h in enumerate(self.hist): h[0] += i.nop + (extra if k <= upto else 0)
        self.hist = [h for h in self.hist if h[0] < 14]
        self.hist.append([0, i])

    def pending(self):
        return any(self.vmq) or any(d for d, _ in self.lq)


class Prog:
    def __init__(self):
        self.src = []
        self.nlab = 0

    def __call__(self, text, *a):
        if a: text = text % a
        for l in text.split('\n'):
            l = l.strip()
            if l: self.src.append(l)

    def newlabel(self, p='L'):
        self.nlab += 1
        return '%s_%d' % (p, self.nlab)

    def finalize(self, verbose=False):
        ins = [Ins(l) for l in self.src]
        out = []
        st = State()
        snaps = []
        stats = {'nops': 0, 'waits': 0}
        for i in ins:
            if i.kind in ('dir', 'label'):
                out.append(i); continue
            vm, lg = st.need_wait(i)
            if vm is not None or lg is not None:
                t = 's_waitcnt'
                if vm is not None: t += ' vmcnt(%d)' % min(vm, 63)
                if lg is not None: t += ' lgkmcnt(%d)' % min(lg, 15)
                w = Ins(t); out.append(w); st.apply(w); stats['waits'] += 1
            n = st.need_nops(i)
            while n > 0:
                k = min(n, 16)
                w = Ins('s_nop %d' % (k - 1)); out.append(w); st.apply(w); n -= k; stats['nops'] += k
            out.append(i); st.apply(i)
            if i.kind == 'branch':
                snaps.append((copy.deepcopy(st), i.target, len(out) - 1))
            if (i.kind == 'branch' and i.uncond) or i.kind == 'end':
                st = State()
        labels = {i.label: k for k, i in enumerate(out) if i.kind == 'label'}
        errs = []
        work = [(s, labels[t], src, 0) for s, t, src in snaps]
        budget = 0
        while work:
            s, k, src, depth = work.pop()
            old_vm = [id(x) for x in s.vmq if x]; old_l = [id(x) for x in s.lq if x[0]]
            steps = 0
            while k < len(out):
                i = out[k]; k += 1
                if i.kind in ('dir', 'label'): continue
                budget += 1
                vm, lg = s.need_wait(i)
                if vm is not None or lg is not None:
                    errs.append('edge from "%s" (#%d): missing wait before "%s"' % (out[src].text, src, i.text)); break
                if s.need_nops(i) > 0:
                    errs.append('edge from "%s" (#%d): hazard before "%s"' % (out[src].text, src, i.text)); break
                s.apply(i); steps += i.nop
                live = any(id(x) in old_vm for x in s.vmq) or any(id(x) in old_l for x in s.lq)
                if not live and steps >= 14: break
                if i.kind == 'end': break
                if i.kind == 'branch':
                    if depth < 3:
                        c = State(); c.vmq = list(s.vmq); c.lq = list(s.lq); c.hist = [list(h) for h in s.hist]
                        work.append((c, labels[i.target], src, depth + 1))
                    if i.uncond: break
                if steps > 4000: break
        if errs:
            raise RuntimeError('\n'.join(sorted(set(errs))[:20]))
        if verbose: print('asmgen: %d instrs, auto nops %d, auto waits %d' % (len(out), stats['nops'], stats['waits']))
        return '\n'.join(('' if i.kind == 'label' else '  ') + i.text for i in out) + '\n'
```

```python
from layout import *

vL16, vIdx, vAw, vA8, vLW, vSW, vSR, vSR1, vOA, vR2, vPerm, vRA, vRB, vR1, vJunk = 0, 1, 2, 3, 4, 5, 6, 7, 8, 9, 10, 12, 13, 14, 15
ACC, AV, ST0, ST1, ST2, AA, VACC, AK = 16, 32, 40, 48, 56, 64, 84, 88
sWq, sWk, sWv, sWo, sMem = 16, 20, 24, 28, 32
sB = 36
sPart = 42
sLine = 43
sPiece = 47
sRed = 48
sStep = 49
sTag = 50
sTagAdd = 51
sMask = 52
sRes = 53
sArm = 54
sCons = 55
sPartG2 = 56
sHopB = 57
sTwS = 58
sTwL = 59
sVtw = 60
sKoff = 61
sVoff = 62
sKM = 63
sVM = 64
sScale = 65
sBudget = 66
sStep1 = 67
mC8 = 68
mC8G01 = 70
mC8G23 = 72
mKM = 74
mEven = 76
sSel0, sSel1, sSelV = 53, 54, 55
sNot = 78
sFlagKV = 80
sNeed = 3
sFlagA = 15
sHint = 32
sHintW = 33
mHint = 34
sOne = 36

LDS_MEM, LDS_O, LDS_SC, LDS_SEL, LDS_W = 0, 0, 10240, 15360, 16384
NL = 18


def vr(b, n): return 'v[%d:%d]' % (b, b + n - 1)


QK = (('q', 0), ('k', 0), ('q', 1), ('k', 1))


def plan(cfg):
    border = []
    qk = lambda s, buf: [((m, s, t), buf) for m, t in QK]
    for s in (0, 1): border += qk(s, s) + [(('v', s), s)]
    border += [(('v', 8), 2), (('v', 2), 3), (('v', 4), 4), (('v', 9), 0)] + qk(8, 2) + [(('v', 6), 1)]
    border += [(('v', 7), 3), (('v', 5), 4), (('v', 3), 0)]
    border += qk(6, 1) + qk(7, 3) + qk(5, 4) + qk(3, 0)
    for m, t in QK: border += [((m, s, t), buf) for s, buf in ((2, 2), (4, 1), (9, 3))]
    horder = [('o', b, 0) for b in (4, 0, 1, 2, 3)]
    for b in (4, 0, 1, 2, 3): horder += [('o', b, j) for j in (1, 2, 3)]
    where = {}
    n = 0
    for i, st in zip(cfg.get('lb', (0, 1, 2, 17, 22, 25, 28, 31, 34, 38, 41, 44)), [ST0, ST1, ST2] * 4):
        where[border[i][0]] = ('l', n, st); n += 1
    for i, st in zip(cfg.get('lh', (0, 1, 2, 12, 14, 16)), [HS0, HS1, HS2] * 2):
        where[horder[i]] = ('l', n, st); n += 1
    assert n == NL
    res = ['v%d' % (96 + 8 * i) for i in range(20)] + ['a%d' % (8 * i) for i in range(32)]
    for f in [x[0] for x in border] + horder:
        if f not in where:
            r = res.pop(0); where[f] = ('r', r[0], int(r[1:]))
    assert not res, res
    return border, horder, where


HACC = AA
HS0, HS1, HS2 = ST0, ST1, ST2
OA = ACC


def breg(w):
    if w[0] == 'r': return '%s[%d:%d]' % (w[1], w[2], w[2] + 7)
    return vr(w[2], 8)


def ld_stage(w):
    return ['ds_read_b128 %s, v%d offset:%d' % (vr(w[2] + 4 * h, 4), vLW, w[1] * 2048 + h * 1024) for h in (0, 1)]


def nops(n):
    r = []
    while n > 0:
        k = min(n, 16); r.append('s_nop %d' % (k - 1)); n -= k
    return '\n'.join(r)


def gen_chain(p, cfg):
    border, horder, where = plan(cfg)
    stamp = cfg.get('stamp', False)
    flags = cfg.get('flags', False)
    nst = [0]
    tm = cfg.get('twmode', 0)

    trace = cfg.get('trace')
    tnames = cfg.setdefault('tnames', [])
    TP = list(range(82, 102, 2)) + list(range(16, 28, 2)) + [34]

    def TS(name):
        if not trace: return []
        r = TP[len(tnames)]; tnames.append(name)
        return ['.long 0x%08x' % (0xc0900000 | (r << 6)), '.long 0']

    def T(name):
        for l in TS(name): p(l)

    def ST(name):
        T(name)
        if stamp and (stamp is True or stamp == 1 or name in stamp):
            p('s_memtime s[%d:%d]' % (82 + 2 * nst[0], 83 + 2 * nst[0])); nst[0] += 1

    srds = ((sWq, 16, 5242880), (sWk, 24, 5242880), (sWv, 32, 5242880), (sWo, 40, 5242880), (sMem, 8, 10240))
    for sr, off, size in srds: p('s_load_dwordx2 s[%d:%d], s[0:1], %d' % (sr, sr + 1, off))
    p('s_waitcnt lgkmcnt(0)')
    for sr, off, size in srds: p('s_mov_b32 s%d, %d\ns_mov_b32 s%d, 0x20000' % (sr + 2, size, sr + 3))
    p('''
    v_and_b32 v16, 15, v0
    v_lshrrev_b32 v17, 4, v0
    ; raw-load voffsets: v10/v11 = q,k rows (+1 row), v12/v13 = v rows, v14 = Wo rows
    v_lshlrev_b32 v12, 15, v17
    v_lshl_add_u32 v12, v16, 2, v12
    s_lshl_b32 s40, s13, 8
    s_lshl_b32 s41, s12, 6
    s_add_u32 s41, s40, s41
    v_add_u32 v10, s41, v12
    v_add_u32 v11, 8192, v10
    s_lshl_b32 s41, s14, 7
    s_add_u32 s40, s40, s41
    s_lshr_b32 s41, s12, 1
    s_lshl_b32 s41, s41, 2
    s_add_u32 s40, s40, s41
    v_lshl_add_u32 v12, v16, 2, v12
    v_add_u32 v12, s40, v12
    v_add_u32 v13, 8192, v12
    v_lshrrev_b32 v18, 1, v17
    v_and_b32 v19, 1, v17
    v_xor_b32 v19, s14, v19
    v_lshlrev_b32 v18, 4, v18
    v_lshl_add_u32 v18, v19, 6, v18
    v_mul_u32_u24 v14, 1280, v18
    v_lshl_add_u32 v14, v16, 2, v14
    s_mul_i32 s40, s13, 163840
    s_mul_i32 s41, s12, 320
    s_add_u32 s40, s40, s41
    v_add_u32 v14, s40, v14
    v_add_u32 v15, 5120, v14
    v_lshlrev_b32 v0, 4, v0
    s_mul_i32 s40, s12, %d
    s_add_u32 s40, s40, %d
    v_add_u32 v%d, s40, v0
    s_mov_b32 s%d, 0x05040100
    s_mov_b32 s%d, 0x07060302
    s_bitcmp1_b32 s12, 0
    s_cselect_b32 s%d, s%d, s%d
    ''' % (NL * 2048, LDS_W, vLW, sSel0, sSel1, sSelV, sSel1, sSel0))
    for i in range(4):
        p('s_xor_b32 s40, s12, %d\ns_mul_i32 s%d, s40, %d' % (i, sB + i, 160 * 8192))
        p('s_mul_i32 s%d, s40, 1280' % (56 + i))

    units = []
    of = [('o', b, j) for j in range(4) for b in range(5)]
    for i in range(0, 20, 2): units.append(('o', of[i], of[i + 1]))
    for m in 'qk':
        for s in (0, 2, 1, 3, 4, 6, 5, 7, 8, 9): units.append((m, s))
    for s in (0, 2, 4, 6, 1, 3, 5, 7, 8, 9): units.append(('v', s))

    def issue(u, base):
        if u[0] == 'o':
            for n, f in enumerate(u[1:]):
                for hf in (0, 1):
                    for i2 in (0, 1):
                        r = base + 8 * n + 4 * hf + 2 * i2
                        p('s_add_u32 s40, s%d, %d' % (56 + f[2], (32 * hf + 8 * i2) * 1280 + 64 * f[1]))
                        p('buffer_load_dword v%d, v14, s[%d:%d], s40 offen' % (r, sWo, sWo + 3))
                        p('buffer_load_dword v%d, v15, s[%d:%d], s40 offen' % (r + 1, sWo, sWo + 3))
            return
        sr = {'q': sWq, 'k': sWk, 'v': sWv}[u[0]]
        va = 12 if u[0] == 'v' else 10
        s = u[1]
        for hf in (0, 1):
            for i4 in range(4):
                r = base + 2 * (4 * hf + i4)
                if s < 8:
                    c = (64 * (s & 1) + 16 * hf + 2 * (i4 & 1) + 32 * (i4 >> 1)) * 8192
                    p('s_add_u32 s40, s%d, %d' % (sB + (s >> 1), c))
                else:
                    c = (160 * (2 * (s - 8) + hf) + 128 + 2 * (i4 & 1) + 16 * (i4 >> 1)) * 8192
                    p('s_mov_b32 s40, %d' % c)
                p('buffer_load_dword v%d, v%d, s[%d:%d], s40 offen' % (r, va, sr, sr + 3))
                p('buffer_load_dword v%d, v%d, s[%d:%d], s40 offen' % (r + 1, va + 1, sr, sr + 3))

    def finish(u, base):
        if u[0] == 'o': fr = [(f, [(base + 8 * n + 2 * (j >> 1), sSel0 + (j & 1)) for j in range(8)]) for n, f in enumerate(u[1:])]
        elif u[0] == 'v': fr = [(u, [(base + 2 * j, sSelV) for j in range(8)])]
        else: fr = [(u + (t,), [(base + 2 * j, sSel0 + t) for j in range(8)]) for t in (0, 1)]
        for n, (f, src) in enumerate(fr):
            w = where[f]
            dst = w[2] if (w[0] == 'r' and w[1] == 'v') else 80 + 8 * n
            for j, (r, sel) in enumerate(src): p('v_perm_b32 v%d, v%d, v%d, s%d' % (dst + j, r + 1, r, sel))
            if w[0] == 'r' and w[1] == 'a':
                for j in range(8): p('v_accvgpr_write_b32 a%d, v%d' % (w[2] + j, dst + j))
            elif w[0] == 'l':
                for h in (0, 1): p('ds_write_b128 v%d, %s offset:%d' % (vLW, vr(dst + 4 * h, 4), w[1] * 2048 + h * 1024))
                p('s_waitcnt lgkmcnt(0)')

    if stamp: p('s_memtime s[98:99]')
    D = 4
    for n in range(D - 1): issue(units[n], 16 + 16 * n)
    for n, u in enumerate(units):
        if n + D - 1 < len(units): issue(units[n + D - 1], 16 + 16 * ((n + D - 1) % D))
        finish(u, 16 + 16 * (n % D))
    if stamp: p('s_memtime s[100:101]\ns_waitcnt lgkmcnt(0)\ns_sub_u32 s81, s100, s98')

    p('''
    v_lshrrev_b32 v18, 4, v0           ; lane
    v_and_b32 v16, 15, v18             ; c
    v_lshrrev_b32 v17, 4, v18          ; g
    v_and_b32 v20, 1, v18              ; hb = c&1
    v_mov_b32 v21, 0x44444444
    v_mov_b32 v22, 0xeeeeeeee
    v_cmp_eq_u32 vcc, 1, v20
    v_cndmask_b32 v{idx}, v21, v22, vcc
    s_lshl_b32 s40, s12, 11
    v_add_u32 v{aw}, s40, v0
    s_lshl_b32 s40, s12, 9
    s_add_u32 s41, s40, 8192
    v_lshrrev_b32 v21, 1, v0
    v_add_u32 v{a8}, s41, v21
    v_and_b32 v19, 7, v16              ; c&7
    v_lshrrev_b32 v25, 1, v16          ; m = c>>1
    ; G2 store offset: 128 g + 16 (c&7)
    v_lshlrev_b32 v21, 7, v17
    v_lshl_add_u32 v{sw}, v19, 4, v21
    s_mul_i32 s41, s12, 1536
    s_add_u32 m0, s41, {sc}
    ; o exchange read: 8192 + 512 w + 128 g + 16 m
    v_lshl_add_u32 v22, v25, 4, v21
    s_add_u32 s40, s40, 8192
    v_add_u32 v{oa}, s40, v22
    ; score read: LDS_SC + 512 hb + 256 (m&1) + 64 (m>>1) + 16 g'   (see SCSW)
    v_and_b32 v22, 1, v25
    v_mul_u32_u24 v22, 272, v22
    v_lshrrev_b32 v23, 1, v25
    v_lshl_add_u32 v26, v23, 6, v22    ; 272 (m&1) + 64 (m>>1)
    v_mul_u32_u24 v22, 544, v20
    v_add_u32 v22, v22, v26
    v_lshl_add_u32 v22, v17, 4, v22
    v_add_u32 v{sr}, {sc}, v22
    ; mem-key read: LDS_SC + 1024 + 64 (m>>1) + 4 (4 g + 2 (m&1) + hb)
    v_lshlrev_b32 v22, 6, v23
    v_lshl_add_u32 v22, v17, 4, v22
    v_and_b32 v24, 3, v16
    v_lshl_add_u32 v22, v24, 2, v22
    v_add_u32 v{sr1}, {sc1}, v22
    ; identity for the transposing MFMA: lane (col,g): slot j <-> col == 4g+j
    v_mov_b32 v23, 0x3f80
    v_mov_b32 v24, 0x3f800000
    v_cmp_eq_u32 vcc, 1, v20
    v_cndmask_b32 v23, v23, v24, vcc
    v_lshlrev_b32 v24, 1, v17
    v_cmp_eq_u32 vcc, v25, v24
    v_cndmask_b32 v{pm0}, 0, v23, vcc
    v_add_u32 v24, 1, v24
    v_cmp_eq_u32 vcc, v25, v24
    v_cndmask_b32 v{pm1}, 0, v23, vcc
    '''.format(idx=vIdx, aw=vAw, a8=vA8, sc=LDS_SC, sw=vSW, oa=vOA, sr=vSR, sr1=vSR1, sc1=LDS_SC + 1088, pm0=vPerm, pm1=vPerm + 1))
    p('''
    v_lshrrev_b32 v22, 3, v18
    v_mul_u32_u24 v22, %d, v22
    v_lshl_add_u32 v%d, v19, 4, v22
    v_and_b32 v22, 1, v19
    v_lshl_add_u32 v22, v17, 1, v22
    v_lshrrev_b32 v23, 2, v19
    v_lshl_add_u32 v22, v23, 4, v22
    v_lshlrev_b32 v22, 4, v22
    v_bfe_u32 v23, v19, 1, 1
    v_lshl_add_u32 v%d, v23, 3, v22
    ''' % (HOPA_STRIDE, vRA, vRB))
    p('''
    s_mul_i32 s58, s14, {xs}           ; this twin's hop buffers
    s_add_u32 s{hopb}, s58, {HOPB}
    s_add_u32 s58, s58, {HOPA}
    s_mul_i32 s{part}, s13, {stride}
    s_mul_i32 s40, s12, 2560
    s_add_u32 s{part}, s{part}, s40
    s_add_u32 s{part}, s{part}, s58
    s_add_u32 s{pg2}, s{part}, 2048
    ; reducer line: wave0 -> G1 lines, wave1 -> G0 lines, wave2 (rank<16) -> G2 lines
    s_lshl_b32 s40, s12, 5
    s_add_u32 s40, s40, s13
    s_cmp_lt_u32 s40, 80
    s_cselect_b32 s{red}, 1, 0
    s_cmp_eq_u32 s12, 2
    s_cbranch_scc1 L_c_g2
    s_lshr_b32 s53, s13, 3             ; wsrc
    s_and_b32 s54, s13, 7              ; line within G
    s_cmp_eq_u32 s12, 0
    s_cselect_b32 s55, 1, 0            ; G
    s_lshl_b32 s40, s55, 3
    s_add_u32 s40, s40, s54            ; line in wave block
    s_lshl_b32 s41, s53, 1
    s_add_u32 s41, s41, s55            ; kstep
    s_and_b32 s61, s54, 1              ; x
    s_lshr_b32 s62, s54, 1             ; gsrc
    s_lshl_b32 s63, s55, 6
    s_lshl_b32 s64, s61, 4
    s_add_u32 s63, s63, s64            ; column base in wave block: 64G+16x
    s_mov_b32 s64, 64                  ; second pair +32 columns (bytes)
    s_branch L_c_g3
    L_c_g2:
    s_lshr_b32 s53, s13, 2
    s_and_b32 s53, s53, 3
    s_and_b32 s62, s13, 3              ; gsrc
    s_add_u32 s40, s62, 16
    s_lshr_b32 s41, s53, 1
    s_add_u32 s41, s41, 8
    s_and_b32 s61, s53, 1
    s_mov_b32 s63, 128
    s_mov_b32 s64, 32
    L_c_g3:
    s_mul_i32 s54, s53, 20
    s_add_u32 s40, s40, s54
    s_lshl_b32 s40, s40, 7
    s_add_u32 s{l0}, s40, s58
    s_add_u32 s{l1}, s{l0}, {o1}
    s_add_u32 s{l2}, s{l0}, {o2}
    s_add_u32 s{l3}, s{l0}, {o3}
    s_lshl_b32 s41, s41, 10
    s_lshl_b32 s61, s61, 9
    s_add_u32 s41, s41, s61
    s_lshl_b32 s54, s62, 6
    s_add_u32 s41, s41, s54
    s_add_u32 s{piece}, s41, s{hopb}
    ; mem0 gather: row (2*gsrc+g'), column 160*wsrc + colbase + 2*i
    s_mul_i32 s53, s53, 160
    s_add_u32 s63, s63, s53
    s_lshl_b32 s63, s63, 1
    s_mul_i32 s62, s62, 2560
    s_add_u32 s63, s63, s62
    s_add_u32 s64, s64, s63
    v_mul_u32_u24 v22, 1280, v17
    v_lshl_add_u32 v22, v19, 2, v22
    buffer_load_dword v24, v22, s[32:35], s63 offen
    buffer_load_dword v25, v22, s[32:35], s64 offen
    s_mov_b32 s68, 0x00ff00ff
    s_mov_b32 s69, 0x00ff00ff
    s_mov_b32 s70, 0x00ff00ff
    s_mov_b32 s71, 0
    s_mov_b32 s72, 0x33333333
    s_mov_b32 s73, 0x33333333
    s_cmp_eq_u32 s14, 0
    s_cselect_b32 s74, 0x33333333, 0
    s_cselect_b32 s75, 0, 0x33333333
    s_mov_b32 s76, 0x55555555
    s_mov_b32 s77, 0x55555555
    s_mov_b32 s{mask}, 0x10000
    s_mov_b32 s36, 0x3f80
    s_lshl_b32 s37, s12, 10
    s_add_u32 s37, s37, 6144
    s_mov_b32 s{scale}, {sc}
    s_mov_b32 s{bud}, 1000000
    ; K/V offsets
    s_lshl_b32 s40, s13, 2
    s_add_u32 s40, s40, s12            ; head*4+wave
    s_lshl_b32 s41, s40, 12
    s_add_u32 s{k}, s41, {KV}
    s_lshl_b32 s53, s14, 10
    s_add_u32 s{v}, s{k}, s53
    s_xor_b32 s{vt}, s{v}, 1024
    s_lshl_b32 s41, s40, 9
    s_add_u32 s{km}, s41, {KM}
    s_lshl_b32 s53, s14, 8
    s_add_u32 s{vm}, s41, s53
    s_add_u32 s{vm}, s{vm}, {VM}
    ; twin ring: [slot][writer][head][2 KiB] in 8-KiB pieces spaced 16 KiB; vA8 carries 8192+512w+8 lane
    s_lshr_b32 s41, s13, 2
    s_lshl_b32 s41, s41, 14
    s_and_b32 s53, s13, 3
    s_lshl_b32 s53, s53, 11
    s_add_u32 s41, s41, s53
    s_add_u32 s41, s41, {TW}
    s_lshl_b32 s53, s14, 17
    s_add_u32 s{tws}, s41, s53
    s_xor_b32 s53, s53, 0x20000
    s_add_u32 s{twl}, s41, s53
    s_mov_b32 s{step}, 0
    '''.format(xs=WS_HOPX, hopb=sHopB, HOPB=WS_HOPB, HOPA=WS_HOPA, part=sPart, stride=HOPA_STRIDE, pg2=sPartG2,
               red=sRed, l0=sLine, l1=sLine + 1, l2=sLine + 2, l3=sLine + 3, o1=8 * HOPA_STRIDE,
               o2=16 * HOPA_STRIDE, o3=24 * HOPA_STRIDE, piece=sPiece, mask=sMask,
               scale=sScale, sc=f2hex(1.4426950408889634 * 128 ** -0.5), bud=sBudget, k=sKoff, KV=WS_KV, v=sVoff, vt=sVtw,
               km=sKM, KM=WS_KM, vm=sVM, VM=WS_VM, TW=(WS_TWIN if tm != 1 else 0x8000000) + cfg.get('twpar', 0) * 8192, tws=sTwS, twl=sTwL, step=sStep))
    cfg['wait_go'](p)
    p('''
    v_min_u32 v24, -2, v24
    v_min_u32 v25, -2, v25
    s_cmp_eq_u32 s%d, 0
    s_cbranch_scc1 L_c_nom0
    s_add_u32 s40, s%d, %d
    s_mov_b64 exec, s[70:71]
    buffer_store_dwordx2 v[24:25], v%d, s[4:7], s40 offen
    s_mov_b64 exec, -1
    L_c_nom0:
    ''' % (sRed, sPiece, 3 * 16384, vRB))
    p('''
    s_lshl_b32 s40, s14, 12
    s_add_u32 s{h}, s40, {base}
    s_lshl_b32 s40, s13, 2
    s_add_u32 s{hw}, s{h}, s40
    '''.format(h=sHint, hw=sHintW, base=WS_HINT, m=mHint, m1=mHint + 1))
    flagl = 's_mov_b64 exec, 3\nbuffer_load_dword v%d, v%d, s[4:7], s%d offen sc1\ns_mov_b64 exec, -1' % (vJunk, vL16, sFlagA)
    flagc = 'v_cmp_ge_u32 s[%d:%d], s%d, v%d' % (sNot, sNot + 1, sNeed, vJunk)

    def flag_for(delta):
        p('''
        s_add_u32 s40, s{step}, {d}
        s_lshr_b32 s{need}, s40, 2
        s_and_b32 s40, s40, 3
        s_lshl_b32 s40, s40, 6
        s_add_u32 s{fa}, s{fb}, s40
        '''.format(step=sStep, d=delta, need=sNeed, fa=sFlagA, fb=sFlagKV))

    def flag_spin(name):
        p(name + ':')
        p(flagl)
        p('s_sub_u32 s{bud}, s{bud}, 1\ns_cbranch_scc1 L_end\ns_waitcnt vmcnt(0)'.format(bud=sBudget))
        p(flagc)
        p('s_and_b32 s40, s%d, 3\ns_cbranch_scc1 %s' % (sNot, name))
    if flags:
        p('s_lshr_b32 s40, s13, 1\ns_lshl_b32 s40, s40, 8\ns_add_u32 s%d, s40, %d' % (sFlagKV, WS_FQKV))
        flag_for(0); flag_spin('L_c_kv0'); flag_for(1); p(flagl)
    kl = ['buffer_load_dwordx4 %s, v%d, s[4:7], s%d offen offset:%d sc1' % (vr(AK + 4 * t, 4), vL16, sKoff, t * 1024) for t in (0, 1)]
    for l in kl: p(l)
    p('s_add_u32 s%d, s%d, 0x80000' % (sKoff, sKoff))
    if stamp:
        for i in range(12): p('s_mov_b32 s%d, 0' % (16 + i))
    p('s_waitcnt vmcnt(0) lgkmcnt(0)\ns_barrier')

    acc = {('q', 0): ACC, ('k', 0): ACC + 4, ('q', 1): ACC + 8, ('k', 1): ACC + 12}

    def smf(d, a, w): return 'v_smfmac_f32_16x16x64_bf16 %s, %s, %s, v%d' % (vr(d, 4), vr(a, 4), breg(w), vIdx)

    lbi = [i for i in range(50) if where[border[i][0]][0] == 'l']

    def prefill():
        for i in lbi[:3]:
            for l in ld_stage(where[border[i][0]]): p(l)
        p('''
        s_add_u32 s41, s{step}, 3
        s_and_b32 s41, s41, 3
        s_lshl_b32 s41, s41, 14
        s_add_u32 s{cons}, s41, s{hopb}
        s_add_u32 s{res}, s41, s{piece}
        s_xor_b32 s41, s41, 0x8000
        s_add_u32 s{arm}, s41, s{piece}
        '''.format(step=sStep, cons=sCons, hopb=sHopB, res=sRes, piece=sPiece, arm=sArm))
    prefill()
    p('L_c_loop:')
    if cfg.get('tmeas'):
        p('s_cmp_lg_u32 s%d, 3\ns_cbranch_scc1 L_c_tm1\ns_memtime s[28:29]\ns_waitcnt lgkmcnt(0)\nL_c_tm1:' % sStep)
        p('s_cmp_lg_u32 s%d, 63\ns_cbranch_scc1 L_c_tm2\ns_memtime s[30:31]\ns_waitcnt lgkmcnt(0)\nL_c_tm2:' % sStep)
    p(nops(cfg.get('dB', 24)))
    if trace:
        r = TP[len(tnames)]; tnames.append('rt'); p('.long 0x%08x\n.long 0' % (0xc0940000 | (r << 6)))
    ST('pollB')
    HP = AV
    CK = AV + 4
    early = 'buffer_load_dwordx4 %s, v%d, s[4:7], s%d offen sc1' % (vr(AA, 4), vAw, sCons)
    late = 'buffer_load_dwordx4 %s, v%d, s[4:7], s%d offen offset:1024 sc1' % (vr(AA + 4, 4), vAw, sCons)
    g2l = 'buffer_load_dwordx4 %s, v%d, s[4:7], s%d offen sc1' % (vr(HP, 4), CK + 1, sCons)

    def chk(r):
        return ['v_max_u32 v%d, v%d, v%d' % (CK, r, r + 2), 'v_cmp_eq_u32 vcc, -1, v%d' % CK]
    RAW = lambda l: l + ' ; raw'
    p('s_cmp_lt_u32 s12, 2\ns_cbranch_scc1 L_c_nog2a')
    p('v_add_u32 v%d, s37, v%d' % (CK + 1, vL16))
    p(g2l)
    p('L_c_nog2a:')
    p(early)
    fill = ['s_and_b32 s40, s%d, 1' % sStep, 's_lshl_b32 s%d, s40, 16' % sTagAdd, 's_xor_b32 s%d, s%d, 0x10000' % (sTag, sTagAdd),
            's_add_u32 s%d, s%d, 1' % (sStep1, sStep), 'v_xor_b32 v%d, 2048, v%d' % (vR1, vAw), 'v_xor_b32 v%d, 4096, v%d' % (vR2, vAw)]
    fill += ['v_mov_b64 %s, 0' % vr(r, 2) for r in range(ACC, ACC + 16, 2)]
    dL = cfg.get('dL', 14)
    for l in fill[:dL]: p(l)
    p(nops(dL - len(fill)))
    p(late)
    T('lateiss')
    for l in fill[dL:]: p(l)
    p('s_waitcnt lgkmcnt(0)')
    p('s_cmp_lt_u32 s12, 2\ns_cbranch_scc1 L_c_nog2b\ns_waitcnt vmcnt(2)')
    for l in chk(HP): p(l)
    p('s_cbranch_vccnz L_c_g2retry\nL_c_g2ok:')
    p('ds_write_b128 v%d, %s' % (CK + 1, vr(HP, 4)))
    p('L_c_nog2b:')
    p('L_c_pollB:')
    p('s_waitcnt vmcnt(1)')
    if stamp: p('s_add_u32 s24, s24, 1')
    p('ds_write_b128 v%d, %s' % (vAw, vr(AA, 4)))
    for l in chk(AA): p(l)
    p('v_mov_b64 %s, 0\nv_mov_b64 %s, 0' % (vr(VACC, 2), vr(VACC + 2, 2)))
    p('s_cbranch_vccnz L_c_Bretry')
    T('e0')

    NB = 50
    gaps = {i: [] for i in range(NB)}

    def rdA(buf, s):
        if s >= 8: return 'ds_read_b128 %s, v%d offset:%d' % (vr(AA + 4 * buf, 4), vL16, s * 1024)
        return 'ds_read_b128 %s, v%d offset:%d' % (vr(AA + 4 * buf, 4), vR2 if s in (4, 5) else vR1, (s & 1) * 1024)
    g1 = cfg.get('gbar1', 2)
    gaps[g1] += ['s_waitcnt lgkmcnt(0)', 's_barrier', rdA(2, 8), rdA(3, 2), rdA(4, 4)]
    gaps[4] += ['s_waitcnt vmcnt(0)'] + chk(AA + 4) + [rdA(0, 9), 's_cbranch_vccnz L_c_lateretry', 'L_c_lateok:']
    gaps[5] += ['ds_write_b128 v%d, %s offset:1024' % (vAw, vr(AA + 4, 4)), 'v_xor_b32 v%d, 6144, v%d' % (vR1, vAw)]
    gaps[6] += ['buffer_load_dwordx4 %s, v%d, s[4:7], s%d offen offset:2048 sc1' % (vr(AV, 4), vL16, sVoff)]
    gaps[7] += ['buffer_load_dwordx4 %s, v%d, s[4:7], s%d offen offset:2048 sc1' % (vr(AV + 4, 4), vL16, sVtw)]
    gb = cfg.get('gbar', 9)
    gaps[gb] += ['s_waitcnt lgkmcnt(0)', 's_barrier']
    gaps[9] += [rdA(1, 6)]
    gaps[11] += [rdA(3, 7), 'v_xor_b32 v%d, 2048, v%d' % (vR1, vAw)]
    gaps[12] += [rdA(4, 5)]
    gaps[13] += [rdA(0, 3)]
    gaps[20] += [rdA(2, 2)]
    gaps[25] += [rdA(1, 4)]
    gaps[29] += [rdA(3, 9)]
    gaps[23] += ['v_add_f32 v%d, v%d, v%d' % (VACC, VACC, VACC + 1), 'v_add_f32 v%d, v%d, v%d' % (VACC + 2, VACC + 2, VACC + 3)]
    gaps[24] += ['v_cvt_pk_bf16_f32 v%d, v%d, v%d' % (VACC, VACC, VACC + 2)]
    gaps[25] += ['v_mov_b32 v%d, s%d' % (VACC + 1, sStep1)]
    gaps[27] += ['v_min_u32 v%d, -2, v%d' % (VACC, VACC)]
    gaps[26] += ['buffer_store_dwordx2 %s, v%d, s[4:7], s%d offen sc1' % (vr(VACC, 2), vA8, sTwS), 'v_lshrrev_b32 v%d, 2, v%d' % (vR2, vL16)]
    vmst = 'buffer_store_dword v%d, v%d, s[4:7], s%d offen sc1' % (VACC, vR2, sVM)
    if not cfg.get('vmlate'): gaps[28] += [vmst]
    gaps[30] += ['v_lshrrev_b32 v%d, 1, v%d' % (vR1, vL16)]
    gaps[31] += ['v_and_b32 v%d, 0x1e0, v%d' % (vR1, vR1)]
    gaps[32] += ['v_and_or_b32 v%d, v%d, 16, v%d' % (vR1, vL16, vR1)]
    twl = 'buffer_load_dwordx2 %s, v%d, s[4:7], s%d offen sc1' % (vr(VACC + 2, 2), vA8, sTwL)
    gt = cfg.get('gtw', 50)
    if gt < NB: gaps[gt] += [twl]
    A = ACC
    gaps[42] += ['v_add_f32 v%d, v%d, v%d' % (A, A, A + 1)]
    gaps[43] += ['v_add_f32 v%d, v%d, v%d' % (A + 2, A + 2, A + 3)]
    gaps[44] += ['v_cvt_pk_bf16_f32 v%d, v%d, v%d' % (A + 1, A, A + 2)]
    gaps[45] += ['v_add_f32 v%d, v%d, v%d' % (A + 4, A + 4, A + 5)]
    gaps[46] += ['v_add_f32 v%d, v%d, v%d' % (A + 6, A + 6, A + 7)]
    gaps[47] += ['v_cvt_pk_bf16_f32 v%d, v%d, v%d' % (A, A + 4, A + 6)]
    gaps[48] += ['v_add_f32 v%d, v%d, v%d' % (A + 8, A + 8, A + 9)]
    gaps[49] += ['v_add_f32 v%d, v%d, v%d' % (A + 10, A + 10, A + 11)]

    def place(G, lines, g0, busy=lambda l: any(x.startswith('ds_') or x.startswith('buffer_') for x in l)):
        g = g0
        for l in lines:
            while busy(G[g]): g += 1
            G[g].insert(0, l)
        return g
    for a, b in zip(lbi, lbi[3:]):
        g = place(gaps, ld_stage(where[border[b][0]]), max(a, 10)); assert g < b - 2, (g, b)
    lhi = [i for i in range(20) if where[horder[i]][0] == 'l']
    for a, b in zip(lbi[-3:], lhi[:3]): place(gaps, ld_stage(where[horder[b]]), a)
    pre = []
    if flags: gaps[34] += [flagc]
    for i, (f, buf) in enumerate(border):
        l = smf(VACC if f[0] == 'v' else acc[(f[0], f[2])], AA + 4 * buf, where[f])
        p(l)
        if i in (4, 10): T('m%d' % i)
        for l in gaps[i]: p(l)
        if i == 5:
            ST('b5')
            for l in pre: p(l)
    ST('bend')
    p('''
    v_mfma_f32_16x16x16_bf16 v[{a4}:{a7}], v[{a0}:{a1}], v[{pm}:{pm1}], 0
    v_cvt_pk_bf16_f32 v{a9}, v{a8}, v{a10}
    v_add_f32 v{a12}, v{a12}, v{a13}
    v_add_f32 v{a14}, v{a14}, v{a15}
    v_cvt_pk_bf16_f32 v{a8}, v{a12}, v{a14}
    v_mfma_f32_16x16x16_bf16 v[{a12}:{a15}], v[{a8}:{a9}], v[{pm}:{pm1}], 0
    '''.format(pm=vPerm, pm1=vPerm + 1, **{'a%d' % i: A + i for i in range(16)}))
    for r in range(HACC, HACC + 12, 2): p('v_mov_b64 %s, 0' % vr(r, 2))
    for i in range(4): p('v_cvt_pk_bf16_f32 v%d, v%d, v%d' % (HACC + 16 + i, A + 4 + i, A + 12 + i))
    X = vr(HACC + 16, 4)
    p('s_mov_b64 vcc, s[72:73]')
    p('v_mfma_f32_16x16x32_bf16 %s, %s, %s, 0' % (vr(A + 12, 4), X, X))
    p('v_mfma_f32_16x16x32_bf16 %s, %s, %s, 0' % (vr(A + 4, 4), X, vr(AK, 4)))
    p('v_mfma_f32_16x16x32_bf16 %s, %s, %s, 0' % (vr(A + 8, 4), X, vr(AK + 4, 4)))
    p('''
    v_cndmask_b32_dpp v{m0}, v{m1}, v{m0}, vcc quad_perm:[2,3,0,1] row_mask:0xf bank_mask:0xf
    ds_write_addtid_b32 v{m0} offset:1088
    ds_write_addtid_b32 v{a6}
    ds_write_addtid_b32 v{a7} offset:272
    ds_write_addtid_b32 v{a10} offset:544
    ds_write_addtid_b32 v{a11} offset:816
    '''.format(m0=A + 14, m1=A + 15, a6=A + 6, a7=A + 7, a10=A + 10, a11=A + 11))
    if gt == NB: p(twl)
    kms = ('v_min_u32 v%d, -2, v%d\n' % (HACC + 16, HACC + 16)) + 's_mov_b64 exec, s[74:75]\nbuffer_store_dwordx4 %s, v%d, s[4:7], s%d offen sc1\ns_mov_b64 exec, -1' % (X, vR1, sKM)
    p('s_cmp_eq_u32 s%d, 63\ns_cbranch_scc1 L_c_last' % sStep)
    p('''
    s_add_u32 s{v}, s{v}, 0x80000
    s_add_u32 s{vt}, s{vt}, 0x80000
    %s s{tws}, s{tws}, 0x40000
    '''.replace('%s', 's_add_u32' if tm == 1 else 's_xor_b32').format(v=sVoff, vt=sVtw, tws=sTwS))
    klate = cfg.get('klate', 0)

    def KL():
        if flags: p('s_and_b32 s40, s%d, 3\ns_cbranch_scc1 L_c_kvspin\nL_c_kvok:' % sNot)
        for l in kl: p(l)
        if flags: flag_for(2); p(flagl)
        p('s_add_u32 s%d, s%d, 0x80000' % (sKoff, sKoff))
    p('s_waitcnt lgkmcnt(0)\ns_barrier')
    ST('bar2')
    E = HACC + 12
    for w in range(4): p('ds_read_b128 %s, v%d offset:%d' % (vr(A + 4 * w, 4), vSR, w * 1536))
    p('ds_read2st64_b32 %s, v%d offset0:0 offset1:6' % (vr(E, 2), vSR1))
    p('ds_read2st64_b32 %s, v%d offset0:12 offset1:18' % (vr(E + 2, 2), vSR1))
    if gt > NB: p(twl)
    if not klate: KL()
    p(kms)
    if cfg.get('vmlate'): p(vmst)
    p('s_add_u32 s{km}, s{km}, 0x10000\ns_add_u32 s{vm}, s{vm}, 0x10000'.format(km=sKM, vm=sVM))

    def pk(op, d, a, b): return 'v_pk_%s_f32 %s, %s, %s' % (op, vr(d, 2), vr(a, 2), vr(b, 2))
    p(pk('add', A, A, A + 4)); p(pk('add', A + 2, A + 2, A + 6))
    p(pk('add', A + 8, A + 8, A + 12)); p(pk('add', A + 10, A + 10, A + 14))
    p(pk('add', A, A, A + 8)); p(pk('add', A + 2, A + 2, A + 10))
    p(pk('add', E, E, E + 2))
    T('dend')
    M, TM = A + 5, A + 6
    XP = 'quad_perm:[1,0,3,2] row_mask:0xf bank_mask:0xf'
    PB, PM = E, E + 4
    OD = A + 8
    p('''
    v_max3_f32 v{M}, v{e0}, v{e1}, v{e2}
    v_add_f32 v{e4}, v{E0}, v{E1}
    v_max3_f32 v{M}, v{M}, v{e3}, v{e4}
    v_mov_b32 v{pm1}, 0
    v_xor_b32 v{r1}, 512, v{oa}
    v_max_f32_dpp v{M}, v{M}, v{M} {xp}
    v_mov_b32 v{T}, v{M}
    v_xor_b32 v{r2}, 1024, v{oa}
    v_permlane16_swap_b32 v{M}, v{T}
    v_max_f32 v{M}, v{M}, v{T}
    v_mov_b32 v{T}, v{M}
    v_permlane32_swap_b32 v{M}, v{T}
    v_max_f32 v{M}, v{M}, v{T}
    v_mul_f32 v{M}, s{sc}, v{M}
    v_fma_f32 v{e4}, v{e4}, s{sc}, -v{M}
    v_fma_f32 v{e0}, v{e0}, s{sc}, -v{M}
    v_fma_f32 v{e1}, v{e1}, s{sc}, -v{M}
    v_fma_f32 v{e2}, v{e2}, s{sc}, -v{M}
    v_fma_f32 v{e3}, v{e3}, s{sc}, -v{M}
    v_exp_f32 v{e0}, v{e0}
    v_exp_f32 v{e1}, v{e1}
    v_exp_f32 v{e2}, v{e2}
    v_exp_f32 v{e3}, v{e3}
    v_cvt_pk_bf16_f32 v{p0}, v{e0}, v{e1}
    v_cvt_pk_bf16_f32 v{p1}, v{e2}, v{e3}
    v_exp_f32 v{e4}, v{e4}
    v_mov_b32_dpp v{p2}, v{p0} {xp}
    v_mov_b32_dpp v{p3}, v{p1} {xp}
    v_mov_b32_dpp v{T}, v{e4} {xp}
    v_add_f32 v{e0}, v{e0}, v{e1}
    v_mfma_f32_16x16x32_bf16 v[{o0}:{o3}], v[{V0}:{V3}], v[{p0}:{p3}], 0
    v_cvt_pk_bf16_f32 v{pm}, v{e4}, v{T}
    v_add_f32 v{e2}, v{e2}, v{e3}
    v_mfma_f32_16x16x32_bf16 v[{o4}:{o7}], v[{V4}:{V7}], v[{p0}:{p3}], 0
    v_add_f32 v{e0}, v{e0}, v{e4}
    v_add_f32 v{e0}, v{e0}, v{e2}
    v_mfma_f32_16x16x16_bf16 v[{o0}:{o3}], v[{w0}:{w1}], v[{pm}:{pm1}], v[{o0}:{o3}]
    v_cmp_ne_u32 vcc, s{step1}, v{w3}
    v_add_f32_dpp v{e0}, v{e0}, v{e0} {xp}
    v_mov_b32 v{T}, v{e0}
    s_cbranch_vccnz L_c_twretry
    L_c_twok:
    v_mfma_f32_16x16x16_bf16 v[{o4}:{o7}], v[{w2}:{w3}], v[{pm}:{pm1}], v[{o4}:{o7}]
    v_permlane16_swap_b32 v{e0}, v{T}
    v_add_f32 v{e0}, v{e0}, v{T}
    v_mov_b32 v{T}, v{e0}
    TWADV
    s_mov_b64 vcc, s[76:77]
    v_permlane32_swap_b32 v{e0}, v{T}
    v_add_f32 v{e0}, v{e0}, v{T}
    v_rcp_f32 v{e4}, v{e0}
    '''.replace('TWADV', {0: 's_xor_b32 s{twl}, s{twl}, 0x40000', 1: 's_add_u32 s{twl}, s{twl}, 0x40000', 2: 's_nop 0'}[tm]).format(M=M, T=TM, xp=XP, sc=sScale, pm=PM, pm1=PM + 1, r1=vR1, r2=vR2, oa=vOA, step1=sStep1, twl=sTwL, E0=E, E1=E + 1,
               **{'e%d' % i: A + i for i in range(5)}, **{'p%d' % i: PB + i for i in range(4)},
               **{'w%d' % i: VACC + i for i in range(4)}, **{'V%d' % i: AV + i for i in range(8)},
               **{'o%d' % i: OD + i for i in range(8)}))
    for i in range(4): p('v_cndmask_b32_dpp v%d, v%d, v%d, vcc %s' % (OD + i, OD + 4 + i, OD + i, XP))
    for i in range(2): p('v_pk_mul_f32 %s, %s, %s op_sel_hi:[1,0]' % (vr(OD + 2 * i, 2), vr(OD + 2 * i, 2), vr(A + 4, 2)))
    for i in range(2): p('v_cvt_pk_bf16_f32 v%d, v%d, v%d' % (OA + i, OD + 2 * i, OD + 2 * i + 1))
    p('ds_write_b64 v%d, %s' % (vA8, vr(OA, 2)))
    ST('owr')
    if klate: KL()
    for i in range(4): p('v_mov_b32_dpp v%d, v%d quad_perm:[%s] row_mask:0xf bank_mask:0xf' % (AV + i, OA + (i & 1), '1,1,3,3' if i >> 1 else '0,0,2,2'))
    for r in range(HACC + 12, HACC + 16, 2): p('v_mov_b64 %s, 0' % vr(r, 2))
    hacc = {b: HACC + 4 * n for n, b in enumerate((4, 0, 1, 2, 3))}
    hg = {i: [] for i in range(24)}
    MK = AV + 4
    hb_ = cfg.get('hbar', 1)
    hg[0] += ['v_xor_b32 v%d, 1536, v%d' % (AV + 5, vOA)]
    hg[2] += ['v_mov_b64 %s, 0' % vr(HACC + 16, 2), 'v_mov_b64 %s, 0' % vr(HACC + 18, 2)]
    hg[4] += ['v_mov_b32 v%d, 0xfffe0000' % MK]
    if tm == 2:
        hg[5] += ['v_mov_b32 v%d, 0' % (VACC + 3)]
        hg[9] += ['buffer_store_dwordx2 %s, v%d, s[4:7], s%d offen sc1' % (vr(VACC + 2, 2), vA8, sTwL), 's_xor_b32 s%d, s%d, 0x40000' % (sTwL, sTwL)]
    hg[hb_] += ['s_waitcnt lgkmcnt(0)', 's_barrier', 'ds_read_b128 %s, v%d' % (vr(OA + 4, 4), vR1), 'ds_read_b128 %s, v%d' % (vr(OA + 8, 4), vR2),
                'ds_read_b128 %s, v%d' % (vr(OA + 12, 4), AV + 5)]
    RO = 'row_ror:8 row_mask:0xf bank_mask:0xf'
    HV, HA = VACC + 2, VACC + 3
    hintl = 'buffer_load_dword v%d, v%d, s[4:7], s%d offen sc1' % (HV, HA, sHint)

    def first(a): return ['v_add_u32 v%d, s%d, v%d' % (a + 1, sTagAdd, a + 1), 'v_and_or_b32 v%d, v%d, v%d, s%d' % (a + 1, a + 1, MK, sTag),
                          'v_cvt_pk_bf16_f32 v%d, v%d, v%d' % (a, a, a + 1), 'v_cvt_pk_bf16_f32 v%d, v%d, v%d' % (a + 2, a + 2, a + 3)]

    def second(q, a): return ['v_cvt_pk_bf16_f32 v%d, v%d, v%d' % (q + 1, a, a + 1), 'v_cvt_pk_bf16_f32 v%d, v%d, v%d' % (q + 3, a + 2, a + 3)]
    q2, q0, q1 = hacc[4], hacc[0], hacc[2]
    f = first(q2)
    hg[9] += f[:2]; hg[10] += f[2:]
    hg[11] += ['v_mov_b32_dpp v%d, v%d %s' % (q2 + 1, q2, RO), 'v_mov_b32_dpp v%d, v%d %s' % (q2 + 3, q2 + 2, RO)]
    hg[12] += ['s_mov_b64 exec, s[68:69]', 'buffer_store_dwordx4 %s, v%d, s[4:7], s%d offen' % (vr(q2, 4), vSW, sPartG2), 's_mov_b64 exec, -1']
    f = first(q0)
    hg[12] += f[:1]; hg[13] += f[1:3]; hg[14] += f[3:]
    f = second(q0, hacc[1])
    hg[15] += f
    hg[16] += ['buffer_store_dwordx4 %s, v%d, s[4:7], s%d offen' % (vr(q0, 4), vL16, sPart)]
    f = first(q1)
    hg[18] += f[:1]; hg[19] += f[1:]
    hg[19] += second(q1, hacc[3]) + ['buffer_store_dwordx4 %s, v%d, s[4:7], s%d offen offset:1024' % (vr(q1, 4), vL16, sPart)]
    for a, b in zip(lhi, lhi[3:]):
        g = place(hg, ld_stage(where[horder[b]]), max(a, hb_ + 1)); assert g < b - 2, (g, b)
    th5 = TS('h5'); thend = TS('hend')
    gh = cfg.get('ghint', 2)
    gp = cfg.get('gprobe', (11, 15, 18))

    def emit_h(watch):
        for i, f in enumerate(horder):
            p(smf(hacc[f[1]], AV if f[2] == 0 else OA + 4 * f[2], where[f]))
            if i == 5:
                for l in th5: p(l)
            if watch and i == gh:
                p('s_mov_b64 exec, 1\nbuffer_store_dword v%d, v%d, s[4:7], s%d offen\ns_mov_b64 exec, -1' % (VACC + 1, vL16, sHintW))
            if watch and i in gp: p(hintl)
            for l in hg[i]: p(l)
            if watch and i == 6: p('v_bfe_u32 v%d, v%d, 2, 7' % (HA, vL16))
        for l in thend: p(l)
        if stamp: p('s_memtime s[92:93]')
        p('s_mov_b32 s%d, s%d' % (sStep, sStep1))
    if stamp: nst[0] += 1
    SEL, RD, TT, LA = AV, AV + 4, VACC, ACC

    def setup_red():
        p('''
        v_and_b32 v{t0}, 16, v{l16}
        v_lshlrev_b32_e64 v{t0}, v{t0}, s{one}
        v_bfe_u32 v{t1}, v{l16}, 5, 3
        v_cmp_eq_u32 vcc, 0, v{t1}
        v_cmp_eq_u32 s[38:39], 1, v{t1}
        v_cmp_eq_u32 s[40:41], 2, v{t1}
        v_cndmask_b32 v{s0}, 0, v{t0}, vcc
        v_cmp_eq_u32 vcc, 3, v{t1}
        v_cndmask_b32 v{s1}, 0, v{t0}, s[38:39]
        v_cndmask_b32 v{s2}, 0, v{t0}, s[40:41]
        v_cndmask_b32 v{s3}, 0, v{t0}, vcc
        v_mov_b64 v[{n0}:{n1}], -1
        '''.format(t0=TT, t1=TT + 1, l16=vL16, one=sOne, s0=SEL, s1=SEL + 1, s2=SEL + 2, s3=SEL + 3, n0=TT + 2, n1=TT + 3))

    def roundA():
        if stamp: p('s_add_u32 s25, s25, 1')
        for q in range(4): p('buffer_load_dwordx4 %s, v%d, s[4:7], s%d offen sc1' % (vr(LA + 4 * q, 4), vRA, sLine + q))
    p('s_cmp_lg_u32 s12, 3\ns_cbranch_scc1 L_c_nohint')
    emit_h(True)
    p(hintl)
    for k, g in enumerate(gp):
        n = len(gp) - k + (1 if g <= 12 else 0) + (1 if g <= 16 else 0) + 1 + k
        p('s_waitcnt vmcnt(%d)' % n)
        p(RAW('v_cmp_ne_u32 vcc, s%d, v%d' % (sStep, HV)))
        p('s_cbranch_vccz L_c_hintok')
        if stamp: p('s_add_u32 s25, s25, 1')
        p(hintl)
    p('L_c_hint:')
    p('s_sub_u32 s{bud}, s{bud}, 1\ns_cbranch_scc1 L_end\ns_waitcnt vmcnt({n})'.format(bud=sBudget, n=len(gp)))
    p(RAW('v_cmp_ne_u32 vcc, s%d, v%d' % (sStep, HV)))
    p('s_cbranch_vccz L_c_hintok')
    if stamp: p('s_add_u32 s25, s25, 1')
    p(hintl)
    p('s_branch L_c_hint')
    p('L_c_hintok:')
    p('s_barrier')
    p('L_c_idle:')
    prefill()
    p('s_branch L_c_nored')
    p('L_c_nohint:')
    emit_h(False)
    setup_red()
    p('s_barrier')
    T('bar4')
    dA = cfg.get('dA', (50, 30, 20))
    tA = TS('pollA')
    p('s_cmp_eq_u32 s12, 0\ns_cbranch_scc1 L_c_pa0')
    p('s_cmp_eq_u32 s%d, 0\ns_cbranch_scc1 L_c_idle' % sRed)
    if dA[1] != dA[2]:
        p('s_cmp_eq_u32 s12, 2\ns_cbranch_scc1 L_c_pa2'); p(nops(dA[1] - dA[2])); p('L_c_pa2:')
    p(nops(dA[2]))
    for l in tA: p(l)
    roundA(); prefill()
    p('s_branch L_c_pa')
    p('L_c_pa0:')
    p(nops(dA[0]))
    for l in tA: p(l)
    roundA(); prefill()
    p('s_branch L_c_pa')
    p('L_c_pollA:')
    roundA()
    p('L_c_pa:')
    p('''
    s_mov_b64 exec, s[70:71]
    buffer_store_dwordx2 v[{n0}:{n1}], v{rb}, s[4:7], s{arm} offen
    s_mov_b64 exec, -1
    s_sub_u32 s{bud}, s{bud}, 1
    s_cbranch_scc1 L_end
    v_mfma_f32_16x16x32_bf16 {rd}, {sel}, {l0}, 0
    v_mfma_f32_16x16x32_bf16 {rd}, {sel}, {l1}, {rd}
    v_bitop3_b32 v{t0}, v{x0}, v{x1}, s{tag} bitop3:0x7e
    v_mfma_f32_16x16x32_bf16 {rd}, {sel}, {l2}, {rd}
    v_mfma_f32_16x16x32_bf16 {rd}, {sel}, {l3}, {rd}
    v_bitop3_b32 v{t1}, v{x2}, v{x3}, s{tag} bitop3:0x7e
    v_bitop3_b32 v{t0}, v{t0}, v{t1}, s{mask} bitop3:0xa8
    v_cmp_ne_u32 vcc, 0, v{t0}
    '''.format(rd=vr(RD, 4), sel=vr(SEL, 4), l0=vr(LA, 4), l1=vr(LA + 4, 4), l2=vr(LA + 8, 4), l3=vr(LA + 12, 4), bud=sBudget,
               t0=TT, t1=TT + 1, x0=LA, x1=LA + 4, x2=LA + 8, x3=LA + 12, tag=sTag, mask=sMask, n0=TT + 2, n1=TT + 3, rb=vRB, arm=sArm))
    T('Aret')
    for i in range(4): p('v_add_f32_dpp v%d, v%d, v%d %s' % (RD + i, RD + i, RD + i, RO))
    p('''
    v_cvt_pk_bf16_f32 v{r0}, v{r0}, v{r1}
    v_cvt_pk_bf16_f32 v{r1}, v{r2}, v{r3}
    v_min_u32 v{r0}, -2, v{r0}
    s_cbranch_vccnz L_c_pollA
    s_mov_b64 exec, s[70:71]
    buffer_store_dwordx2 v[{r0}:{r1}], v{rb}, s[4:7], s{res} offen
    s_mov_b64 exec, -1
    L_c_nored:
    '''.format(r0=RD, r1=RD + 1, r2=RD + 2, r3=RD + 3, rb=vRB, res=sRes))
    ST('red')
    p('s_barrier')
    if stamp:
        n = nst[0]
        p('s_memtime s[%d:%d]\ns_waitcnt lgkmcnt(0)' % (82 + 2 * n, 83 + 2 * n))
        for i in range(n): p('s_sub_u32 s40, s%d, s%d\ns_add_u32 s%d, s%d, s40' % (84 + 2 * i, 82 + 2 * i, 16 + i, 16 + i))
    if trace:
        p('s_cmp_lg_u32 s%d, %d\ns_cbranch_scc1 L_c_loop\ns_waitcnt lgkmcnt(0)' % (sStep, trace))
        for i, r in enumerate(TP[:len(tnames)]): p('v_writelane_b32 v%d, s%d, %d' % (vJunk, r, i))
        p('s_lshl_b32 s40, s14, 5\ns_add_u32 s40, s40, s13\ns_lshl_b32 s40, s40, 2\ns_add_u32 s40, s40, s12\ns_lshl_b32 s40, s40, 7\ns_add_u32 s40, s40, %d' % WS_STAMP)
        p('v_lshrrev_b32 v%d, 2, v%d\ns_mov_b64 exec, 0xfffff\nbuffer_store_dword v%d, v%d, s[4:7], s40 offen\ns_mov_b64 exec, -1' % (vR1, vL16, vJunk, vR1))
    p('s_branch L_c_loop')
    p('L_c_twretry:')
    if stamp: p('s_add_u32 s26, s26, 1')
    p(twl)
    p('''
    s_sub_u32 s{bud}, s{bud}, 1
    s_cbranch_scc1 L_end
    s_waitcnt vmcnt(0)
    v_cmp_ne_u32 vcc, s{step1}, v{w3}
    s_cbranch_vccnz L_c_twretry
    s_branch L_c_twok
    '''.format(bud=sBudget, step1=sStep1, w3=VACC + 3))
    for name, ld, reg, back in (('late', late, AA + 4, 'L_c_lateok'), ('g2', g2l, HP, 'L_c_g2ok')):
        p('L_c_%sretry:' % name)
        if stamp: p('s_add_u32 s27, s27, %d' % (1 if name == 'late' else 1000))
        p(ld)
        p('s_sub_u32 s{bud}, s{bud}, 1\ns_cbranch_scc1 L_end\ns_waitcnt vmcnt(0)'.format(bud=sBudget))
        for l in chk(reg): p(l)
        p('s_cbranch_vccnz L_c_%sretry\ns_branch %s' % (name, back))
    if flags:
        flag_spin('L_c_kvspin'); p('s_branch L_c_kvok')
    p('L_c_Bretry:')
    p(early); p(late)
    p('s_sub_u32 s{bud}, s{bud}, 1\ns_cbranch_scc1 L_end\ns_branch L_c_pollB'.format(bud=sBudget))
    p('L_c_last:')
    p(kms)
    if cfg.get('vmlate'): p(vmst)
    p('s_waitcnt vmcnt(0) lgkmcnt(0)')
    if stamp:
        p('s_nop 7')
        for i in range(12): p('v_mov_b32 v%d, s%d' % (16 + i, 16 + i))
        p('v_mov_b32 v23, s81')
        p('s_lshl_b32 s40, s14, 5\ns_add_u32 s40, s40, s13\ns_lshl_b32 s40, s40, 2\ns_add_u32 s40, s40, s12\ns_lshl_b32 s40, s40, 6\ns_add_u32 s40, s40, %d' % WS_STAMP)
        p('s_mov_b64 exec, 1')
        for i in range(3): p('buffer_store_dwordx4 v[%d:%d], v0, s[4:7], s40 offen offset:%d' % (16 + 4 * i, 19 + 4 * i, 16 * i))
        p('s_mov_b64 exec, -1')
    p('s_branch L_end')
```

```python
import struct
def f2hex(x): return '0x%08x' % struct.unpack('<I', struct.pack('<f', x))[0]
HOPA_STRIDE = 10240 + 128
WS_FQKV    = 0x0000000
WS_FH      = 0x0001000
WS_FU      = 0x0002000
WS_HINT    = 0x000e000
WS_HOPA    = 0x0010000
WS_HOPB    = 0x0070000
WS_HOPX    = 0x0080000
WS_TWIN    = 0x0100000
WS_MOD     = 0x0188000
CTRL_END   = 0x018c000
WS_STAMP   = 0x01a0000
WS_H       = 0x0400000
WS_KM      = 0x0800000
WS_VM      = 0x0c00000
WS_Q       = 0x1000000
WS_KV      = 0x2000000
WS_POST    = 0x4100000
WS_SIZE    = 0x10000000
```

```python
from layout import *
from worker import *

ROWS = 32 * 1280 + 256
PART_B, H2 = 0x180000, 0x300000
L_H2, L_WD, L_O, L_ACT, L_RED = 0, 40960, 122880, 131072, 135168
sSeg, sIt, sPA, sPB, sH2, sFl, sQ, sKV, sKM, sVM, sScale, sRowA, sRowB, sXo, sSelW = 61, 62, 63, 64, 65, 66, 67, 68, 69, 70, 71, 72, 73, 74, 75
mMask = 76
vKM, vOW, vSt4, vSt1, vRA, vRB, vRW, vL4, vH2, vAW, vWD = 4, 5, 6, 7, 8, 9, 10, 11, 12, 13, 14
SEL = 16
MODV = 24
X1 = 44
XR = 54
IN = 60
WK = 124


def gen_post(p, cfg):
    st = ' sc1' if cfg.get('slow') else ''
    L = lambda s: s + cfg.get('sfx', '')
    p('''
    v_and_b32 v16, 15, v{l}             ; c
    v_lshrrev_b32 v17, 4, v{l}          ; g
    s_mul_i32 s{t}, s12, 320
    ; Wo rows 8g: v2 (x4 part), v3 (x1 part)
    v_mul_u32_u24 v18, 10240, v17
    s_mul_i32 s{t2}, s13, 163840
    s_add_u32 s{t2}, s{t2}, s{t}
    v_add_u32 v18, s{t2}, v18
    v_lshl_add_u32 v2, v16, 4, v18
    v_lshl_add_u32 v3, v16, 2, v18
    ; W_down rows 64 rank + 16 g: v4, v5
    v_mul_u32_u24 v18, 20480, v17
    s_mul_i32 s{t2}, s13, 81920
    s_add_u32 s{t2}, s{t2}, s{t}
    v_add_u32 v18, s{t2}, v18
    v_lshl_add_u32 v4, v16, 4, v18
    v_lshl_add_u32 v5, v16, 2, v18
    ; gate / up rows 8g, column 64 rank + 4c + (w&2): v6
    v_mul_u32_u24 v18, 27648, v17
    s_lshl_b32 s{t2}, s13, 7
    s_lshr_b32 s{t}, s12, 1
    s_lshl_b32 s{t}, s{t}, 2
    s_add_u32 s{t2}, s{t2}, s{t}
    v_add_u32 v18, s{t2}, v18
    v_lshl_add_u32 v6, v16, 3, v18
    s_bitcmp1_b32 s12, 0
    s_cselect_b32 s{sw}, s{s1}, s{s0}
    s_mul_i32 s{t}, s12, 20480
    s_add_u32 s{t}, s{t}, {lwd}
    v_add_u32 v{wd}, s{t}, v{l16}
    '''.format(l=vL, t=sT, t2=sT2, sw=sSelW, s0=sSel0, s1=sSel1, lwd=L_WD, wd=vWD, l16=vL16))
    RB = 32

    def rows(u):
        if u[0] == 'o': return [32 * u[1] + j for j in range(8)]
        return [2 * u[1] + (i4 >> 1) + 8 * (i4 & 1) + 4 * z for i4 in range(4) for z in (0, 1)]

    def issue_od(u, slot):
        b = RB + 40 * slot
        sr, va = (sWo, 2) if u[0] == 'o' else (sWd, 4)
        for j, r in enumerate(rows(u)):
            p('s_mov_b32 s%d, %d' % (sT, r * 1280))
            p('buffer_load_dwordx4 %s, v%d, %s, s%d offen' % (vr(b + 4 * j, 4), va, srd(sr), sT))
            p('buffer_load_dword v%d, v%d, %s, s%d offen offset:256' % (b + 32 + j, va + 1, srd(sr), sT))

    def finish_od(u, slot):
        b = RB + 40 * slot
        for t in range(10):
            for i4 in range(4):
                lo = b + 8 * i4 + (t >> 1) if t < 8 else b + 32 + 2 * i4
                hi = lo + 4 if t < 8 else lo + 1
                if u[0] == 'o': put(p, 16 * t + 4 * u[1] + i4, hi, lo, sSel0 + (t & 1), 16 + i4)
                else: p('v_perm_b32 v%d, v%d, v%d, s%d' % (16 + 4 * (t & 1) + i4, hi, lo, sSel0 + (t & 1)))
            if u[0] == 'd':
                p('ds_write_b128 v%d, %s offset:%d' % (vWD, vr(16 + 4 * (t & 1), 4), (2 * t + u[1]) * 1024))
                if t & 1: p('s_waitcnt lgkmcnt(0)')
    pipeline([('o', k) for k in range(4)], 3, issue_od, finish_od)
    p('s_cmp_ge_u32 s13, 27\ns_cbranch_scc1 ' + L('L_p_now'))
    pipeline([('d', k) for k in range(2)], 3, issue_od, finish_od)

    def issue_g(ks, slot):
        b = RB + 16 * slot
        for i4 in range(4):
            p('s_mov_b32 s%d, %d' % (sT, (32 * ks + 2 * i4) * 3456))
            for m, sr in enumerate((sWg, sWu)):
                p('buffer_load_dword v%d, v6, %s, s%d offen' % (b + 8 * m + 2 * i4, srd(sr), sT))
                p('buffer_load_dword v%d, v6, %s, s%d offen offset:3456' % (b + 8 * m + 2 * i4 + 1, srd(sr), sT))

    def finish_g(ks, slot):
        b = RB + 16 * slot
        for m in (0, 1):
            for i4 in range(4): put(p, 160 + 8 * ks + 4 * m + i4, b + 8 * m + 2 * i4 + 1, b + 8 * m + 2 * i4, sSelW, 16 + i4)
    pipeline(list(range(20)), 4, issue_g, finish_g)
    p(L('L_p_now') + ':')
    p('''
    s_waitcnt vmcnt(0) lgkmcnt(0)
    v_and_b32 v60, 15, v{l}             ; c
    v_lshrrev_b32 v61, 4, v{l}          ; g
    v_lshlrev_b32 v{l4}, 2, v{l}
    ; k_mem gather: 128 g + 32 (c>>2) + 16 (c&1)
    v_lshrrev_b32 v62, 1, v{l16}
    v_and_b32 v62, 0x1e0, v62
    v_and_or_b32 v{km}, v{l16}, 16, v62
    ; o write: L_O + qt*4096 + (2 eh + (g>>1))*1024 + (g&1)*512 + 16 c
    s_and_b32 s{t}, s12, 1
    s_lshl_b32 s{t}, s{t}, 12
    s_lshr_b32 s{t2}, s12, 1
    s_lshl_b32 s{t2}, s{t2}, 11
    s_add_u32 s{t}, s{t}, s{t2}
    s_add_u32 s{t}, s{t}, {lo}
    v_lshlrev_b32 v62, 9, v61
    v_lshl_add_u32 v62, v60, 4, v62
    v_add_u32 v{ow}, s{t}, v62
    ; partial stores: row 4g, this head, columns of this wave
    s_mul_i32 s{t}, s13, 1280
    s_mul_i32 s{t2}, s12, 320
    s_add_u32 s{t}, s{t}, s{t2}
    v_mul_u32_u24 v62, {rows4}, v61
    v_add_u32 v62, s{t}, v62
    v_lshl_add_u32 v{st4}, v60, 4, v62
    v_lshl_add_u32 v{st1}, v60, 2, v62
    ; reduce loads: partial 8w + g (+4), granule c
    s_lshl_b32 s{t}, s12, 3
    v_add_u32 v62, s{t}, v61
    v_mul_u32_u24 v63, 1280, v62
    v_lshl_add_u32 v{ra}, v60, 4, v63
    v_mov_b32 v64, 0x7f000000
    v_cmp_gt_u32 vcc, 27, v62
    v_cndmask_b32 v{rb}, v64, v{ra}, vcc
    ; reduce scratch write: L_RED + 2560 w + (g>>1)*512 + 32 c + 16 (g&1)
    s_mul_i32 s{t}, s12, 2560
    s_add_u32 s{t}, s{t}, {lred}
    v_lshrrev_b32 v62, 1, v61
    v_lshlrev_b32 v62, 9, v62
    v_lshl_add_u32 v62, v60, 5, v62
    v_and_b32 v63, 1, v61
    v_lshl_add_u32 v62, v63, 4, v62
    v_add_u32 v{rw}, s{t}, v62
    ; h2 store: column 128k + 2l -> chunk 16k + (l>>2): (l>>4)*2048 + ((l>>2)&3)*256 + 4 (l&3) + row part
    v_lshlrev_b32 v62, 11, v61
    v_bfe_u32 v63, v{l}, 2, 2
    v_lshl_add_u32 v62, v63, 8, v62
    v_and_b32 v63, 3, v{l}
    v_lshl_add_u32 v62, v63, 2, v62
    s_lshr_b32 s{t}, s13, 4
    s_lshl_b32 s{t}, s{t}, 10
    s_and_b32 s{t2}, s13, 15
    s_lshl_b32 s{t2}, s{t2}, 4
    s_add_u32 s{t}, s{t}, s{t2}
    v_add_u32 v{h2}, s{t}, v62
    ; act write: L_ACT + (w>>1)*1024 + 16 lane + 8 (w&1)
    s_lshr_b32 s{t}, s12, 1
    s_lshl_b32 s{t}, s{t}, 10
    s_and_b32 s{t2}, s12, 1
    s_lshl_b32 s{t2}, s{t2}, 3
    s_add_u32 s{t}, s{t}, s{t2}
    s_add_u32 s{t}, s{t}, {lact}
    v_add_u32 v{aw}, s{t}, v{l16}
    ; selection matrices
    v_and_b32 v62, 16, v{l16}
    s_movk_i32 s{t}, 0x3f80
    v_lshlrev_b32_e64 v62, v62, s{t}
    v_lshrrev_b32 v63, 1, v60
    '''.format(l=vL, l16=vL16, l4=vL4, km=vKM, t=sT, t2=sT2, lo=L_O, ow=vOW, rows4=4 * ROWS, st4=vSt4, st1=vSt1, ra=vRA, rb=vRB,
               lred=L_RED, rw=vRW, h2=vH2, lact=L_ACT, aw=vAW))
    for i in range(8): p('v_cmp_eq_u32 vcc, %d, v63\nv_cndmask_b32 v%d, 0, v62, vcc' % (i, SEL + i))
    p('s_and_b32 s{t}, s12, 1\ns_lshl_b32 s{t}, s{t}, 4\nv_add_u32 v62, s{t}, v60\nv_lshlrev_b32 v63, 2, v61\nv_sub_u32 v62, v62, v63'.format(t=sT))
    for T in (0, 1):
        for i in range(4): p('v_cmp_le_i32 s[%d:%d], %d, v62' % (mMask + 8 * T + 2 * i, mMask + 8 * T + 2 * i + 1, 16 * T + i))
    p('''
    s_lshl_b32 s{t}, s{y}, 22
    s_add_u32 s{pa}, s{t}, {post}
    s_add_u32 s{pb}, s{pa}, {pbo}
    s_add_u32 s{h2}, s{pa}, {h2o}
    s_mul_i32 s{t}, s13, {rows}
    s_add_u32 s{rowa}, s{pa}, s{t}
    s_add_u32 s{rowb}, s{pb}, s{t}
    s_lshl_b32 s{t}, s{y}, 9
    s_add_u32 s{fl}, s{t}, {fu}
    s_mov_b32 s{seg}, s{y}
    s_mov_b32 s{it}, 1
    s_mov_b32 s{sc}, {scv}
    '''.format(t=sT, y=sY, pa=sPA, post=WS_POST, pb=sPB, pbo=PART_B, h2=sH2, h2o=H2, rows=ROWS, rowa=sRowA, rowb=sRowB, fl=sFl, fu=WS_FU,
               seg=sSeg, it=sIt, sc=sScale, scv=f2hex(1.4426950408889634 * 128 ** -0.5)))
    p('''
    s_lshr_b32 s{t}, s13, 1
    s_lshl_b32 s{t}, s{t}, 8
    s_add_u32 s{t}, s{t}, {fq}
    s_mov_b32 s{t2}, {mod}
    {l}:
    s_mov_b64 exec, 0x7777
    buffer_load_dword v60, v{l16}, s[4:7], s{t} offen sc1
    s_mov_b64 exec, -1
    '''.format(t=sT, t2=sT2, fq=WS_FQKV, mod=WS_MOD + 2560, l=L('L_p_w0'), l16=vL16))
    for j in range(20):
        if j == 15: p('s_add_u32 s%d, s%d, 3840' % (sT3, sT2))
        p('buffer_load_dword v%d, v%d, s[4:7], s%d offen offset:%d sc1' % (MODV + j, vL4, sT2 if j < 15 else sT3, 256 * (j % 15)))
    p('s_sub_u32 s{b}, s{b}, 1\ns_cbranch_scc1 L_end\ns_waitcnt vmcnt(0)'.format(b=sBud))
    p('v_max_u32 v61, v%d, v%d' % (MODV, MODV + 1))
    for j in range(1, 10): p('v_max3_u32 v61, v61, v%d, v%d' % (MODV + 2 * j, MODV + 2 * j + 1))
    p('''
    v_cmp_eq_u32 vcc, -1, v61
    s_cbranch_vccnz {l}
    v_cmp_ne_u32 vcc, 16, v60
    s_and_b32 s{t3}, vcc_lo, 0x7777
    s_cbranch_scc1 {l}
    '''.format(l=L('L_p_w0'), t3=sT3))
    wait_count(p, DBG_RDY2, 192, sBud, 60)

    def seg_addrs():
        p('''
        s_lshl_b32 s{t}, s{seg}, 5
        s_add_u32 s{t}, s{t}, s13
        s_mul_i32 s{xo}, s{t}, 1280
        s_lshl_b32 s{q}, s{t}, 13
        s_and_b32 s{t2}, s12, 1
        s_lshl_b32 s{t2}, s{t2}, 10
        s_add_u32 s{q}, s{q}, s{t2}
        s_add_u32 s{q}, s{q}, {Q}
        s_lshl_b32 s{kv}, s{t}, 14
        s_add_u32 s{kv}, s{kv}, {KV}
        s_lshl_b32 s{km}, s{t}, 11
        s_lshr_b32 s{t2}, s12, 1
        s_lshl_b32 s{t2}, s{t2}, 8
        s_add_u32 s{vm}, s{km}, s{t2}
        s_add_u32 s{km}, s{km}, {KM}
        s_add_u32 s{vm}, s{vm}, {VM}
        '''.format(t=sT, t2=sT2, seg=sSeg, xo=sXo, q=sQ, Q=WS_Q, kv=sKV, KV=WS_KV, km=sKM, KM=WS_KM, vm=sVM, VM=WS_VM))
    Q, K, V = IN, IN + 16, IN + 48

    def fetch_inputs():
        for w in range(4):
            if w == 2: p('s_add_u32 s%d, s%d, 4096' % (sQ, sQ))
            p('buffer_load_dwordx4 %s, v%d, s[4:7], s%d offen offset:%d sc1' % (vr(Q + 4 * w, 4), vL16, sQ, (w & 1) * 2048))
        p('s_lshr_b32 s{t2}, s12, 1\ns_lshl_b32 s{t2}, s{t2}, 10\ns_add_u32 s{t2}, s{t2}, s{kv}'.format(t2=sT2, kv=sKV))
        for w in range(4):
            for T in (0, 1): p('buffer_load_dwordx4 %s, v%d, s[4:7], s%d offen offset:%d sc1' % (vr(K + 8 * w + 4 * T, 4), vL16, sKV, T * 1024))
            p('buffer_load_dwordx4 %s, v%d, s[4:7], s%d offen offset:2048 sc1' % (vr(V + 4 * w, 4), vL16, sT2))
            if w < 3: p('s_add_u32 s{kv}, s{kv}, 4096\ns_add_u32 s{t2}, s{t2}, 4096'.format(t2=sT2, kv=sKV))

    def signal(ph):
        l = p.newlabel(L('L_ps'))
        p('''
        s_waitcnt vmcnt(0)
        s_barrier
        s_cmp_lg_u32 s12, 0
        s_cbranch_scc1 {l}
        s_lshl_b32 s{t}, s13, 2
        s_add_u32 s{t}, s{t}, s{fl}
        v_mov_b32 v2, s{it}
        s_mov_b64 exec, 1
        buffer_store_dword v2, v{ln}, s[4:7], s{t} offen offset:{o}{st}
        s_mov_b64 exec, -1
        {l}:
        '''.format(l=l, t=sT, fl=sFl, it=sIt, ln=vL, o=128 * ph, st=st))

    def await_(ph, n):
        l = p.newlabel(L('L_pw'))
        p('''
        s_cmp_lg_u32 s12, 0
        s_cbranch_scc1 {l}x
        s_mov_b32 exec_lo, {m}
        s_mov_b32 exec_hi, 0
        {l}:
        buffer_load_dword v2, v{l4}, s[4:7], s{fl} offen offset:{o} sc1
        s_sub_u32 s{b}, s{b}, 1
        s_cbranch_scc1 L_end
        s_waitcnt vmcnt(0)
        v_cmp_gt_u32 vcc, s{it}, v2
        s_cbranch_vccnz {l}
        s_mov_b64 exec, -1
        {l}x:
        s_barrier
        '''.format(l=l, m=hex((1 << n) - 1), l4=vL4, fl=sFl, o=128 * ph, b=sBud, it=sIt))

    def gemm_out(nks, afrag, bfrag, base, pre=None):
        AC, O = WK, WK + 40
        for T in (0, 1):
            for t in range(10):
                for ks in range(nks):
                    a = vr(AC + 4 * t, 4)
                    p('v_mfma_f32_16x16x32_bf16 %s, %s, %s, %s' % (a, afrag(T, ks), bfrag(T, t, ks), a if ks else '0'))
                    if pre:
                        for l in pre(T, t, ks): p(l)
            for i in range(4):
                o = O + 6 * (i & 1)
                for d in range(5): p('v_cvt_pk_bf16_f32 v%d, v%d, v%d' % (o + d, AC + 8 * d + i, AC + 8 * d + 4 + i))
                p('s_add_u32 s%d, s%d, %d' % (sT, base, (16 * T + i) * ROWS))
                p('buffer_store_dwordx4 %s, v%d, s[4:7], s%d offen%s' % (vr(o, 4), vSt4, sT, st))
                p('buffer_store_dword v%d, v%d, s[4:7], s%d offen offset:256%s' % (o + 4, vSt1, sT, st))

    def reduce(row, second):
        LD, D = WK, WK + 40
        p('s_add_u32 s%d, s%d, 5120' % (sT, row))
        for a in (0, 1):
            va = vRB if second else vRA
            if second and a == 1:
                p('s_cmp_eq_u32 s12, 3\ns_cselect_b32 s%d, 0x7f000000, 0\nv_or_b32 v3, s%d, v%d' % (sT2, sT2, vRB)); va = 3
            for ch in range(5):
                p('buffer_load_dwordx4 %s, v%d, s[4:7], s%d offen offset:%d sc1' % (vr(LD + 20 * a + 4 * ch, 4), va, sT if a else row, 256 * ch))
        for a in (0, 1):
            for ch in range(5):
                d = vr(D + 4 * (ch >> 1), 4)
                p('v_mfma_f32_16x16x32_bf16 %s, %s, %s, %s' % (d, vr(SEL + 4 * (ch & 1), 4), vr(LD + 20 * a + 4 * ch, 4), d if (a or ch & 1) else '0'))
        p('ds_write_b128 v%d, %s\nds_write_b128 v%d, %s offset:1024' % (vRW, vr(D, 4), vRW, vr(D + 4, 4)))
        p('s_mov_b32 exec_hi, 0\nds_write_b128 v%d, %s offset:2048\ns_mov_b64 exec, -1' % (vRW, vr(D + 8, 4)))
        p('v_lshlrev_b32 v2, 1, v%d\nv_add_u32 v2, %d, v2\ns_waitcnt lgkmcnt(0)\ns_barrier' % (vL4, L_RED))

    def gather():
        R = WK
        for w in range(4):
            for k in range(5): p('ds_read_b64 %s, v2 offset:%d' % (vr(R + 10 * w + 2 * k, 2), 2560 * w + 512 * k))
        for k in range(5):
            r = R + 2 * k
            p('v_pk_add_f32 %s, %s, %s' % (vr(r, 2), vr(r, 2), vr(r + 10, 2)))
            p('v_pk_add_f32 %s, %s, %s' % (vr(r + 20, 2), vr(r + 20, 2), vr(r + 30, 2)))
            p('v_pk_add_f32 %s, %s, %s' % (vr(r, 2), vr(r, 2), vr(r + 20, 2)))

    def wavesum(r, t):
        for q in ('quad_perm:[1,0,3,2]', 'quad_perm:[2,3,0,1]', 'row_ror:4', 'row_ror:8'):
            p('v_add_f32_dpp v%d, v%d, v%d %s row_mask:0xf bank_mask:0xf' % (r, r, r, q))
        xsum(p, r, t)

    def rnd(r):
        p('v_cvt_pk_bf16_f32 v%d, v%d, v%d' % (r + 1, r, r + 1)); unpack2(r + 1, r)

    def unpack2(src, d): p('v_lshlrev_b32 v%d, 16, v%d\nv_and_b32 v%d, 0xffff0000, v%d' % (d, src, d + 1, src))

    seg_addrs()
    fetch_inputs()
    p(L('L_p_loop') + ':')
    for k in range(5): p('buffer_load_dword v%d, v%d, %s, s%d offen offset:%d' % (XR + k, vL4, srd(sX), sXo, 256 * k))
    KMr, VMr, S = WK, WK + 16, WK + 24
    for T in (0, 1):
        for w in range(4):
            d = vr(S + 4 * T, 4)
            p('v_mfma_f32_16x16x32_bf16 %s, %s, %s, %s' % (d, vr(K + 8 * w + 4 * T, 4), vr(Q + 4 * w, 4), d if w else '0'))
    for w in range(4): p('v_mov_b32 v%d, 0' % (VMr + 2 * w + 1))
    p('v_mov_b32 v3, 0xff800000')
    p(L('L_p_km') + ':')
    for w in range(4):
        p('buffer_load_dwordx4 %s, v%d, s[4:7], s%d offen offset:%d sc1' % (vr(KMr + 4 * w, 4), vKM, sKM, 512 * w))
        p('buffer_load_dword v%d, v%d, s[4:7], s%d offen offset:%d sc1' % (VMr + 2 * w, vL4, sVM, 512 * w))
    p('''
    s_sub_u32 s{b}, s{b}, 1
    s_cbranch_scc1 L_end
    s_waitcnt vmcnt(0)
    v_max3_u32 v2, v{k0}, v{k1}, v{k2}
    v_max3_u32 v2, v2, v{k3}, v{v0}
    v_max3_u32 v2, v2, v{v1}, v{v2}
    v_max_u32 v2, v2, v{v3}
    v_cmp_eq_u32 vcc, -1, v2
    s_cbranch_vccz {l}x
    s_sleep 4
    s_branch {l}
    {l}x:
    '''.format(b=sBud, k0=KMr, k1=KMr + 4, k2=KMr + 8, k3=KMr + 12, v0=VMr, v1=VMr + 2, v2=VMr + 4, v3=VMr + 6, l=L('L_p_km')))
    for w in range(4):
        d = vr(S + 8, 4)
        p('v_mfma_f32_16x16x32_bf16 %s, %s, %s, %s' % (d, vr(KMr + 4 * w, 4), vr(Q + 4 * w, 4), d if w else '0'))
    for j in range(8): p('v_cndmask_b32 v%d, v3, v%d, s[%d:%d]' % (S + j, S + j, mMask + 2 * j, mMask + 2 * j + 1))
    M, TM, P = S + 12, S + 13, S + 14
    p('v_max3_f32 v%d, v%d, v%d, v%d' % (M, S, S + 1, S + 2))
    for j in (3, 5, 7): p('v_max3_f32 v%d, v%d, v%d, v%d' % (M, M, S + j, S + j + 1))
    p('v_max_f32 v%d, v%d, v%d' % (M, M, S + 9))
    xsum(p, M, TM, 'max')
    p('v_mul_f32 v%d, s%d, v%d' % (M, sScale, M))
    for j in range(10): p('v_fma_f32 v%d, v%d, s%d, -v%d' % (S + j, S + j, sScale, M))
    for j in range(10): p('v_exp_f32 v%d, v%d' % (S + j, S + j))
    for j in range(5): p('v_cvt_pk_bf16_f32 v%d, v%d, v%d' % (P + j, S + 2 * j, S + 2 * j + 1))
    p('v_mov_b32 v%d, 0' % (P + 5))
    OD = KMr
    for w in range(4): p('v_mfma_f32_16x16x32_bf16 %s, %s, %s, 0' % (vr(OD + 4 * w, 4), vr(V + 4 * w, 4), vr(P, 4)))
    for w in range(4): p('v_mfma_f32_16x16x16_bf16 %s, %s, %s, %s' % (vr(OD + 4 * w, 4), vr(VMr + 2 * w, 2), vr(P + 4, 2), vr(OD + 4 * w, 4)))
    for j in range(1, 10): p('v_add_f32 v%d, v%d, v%d' % (S, S, S + j))
    xsum(p, S, TM)
    p('v_rcp_f32 v%d, v%d' % (S, S))
    for j in range(8): p('v_pk_mul_f32 %s, %s, %s op_sel_hi:[1,0]' % (vr(OD + 2 * j, 2), vr(OD + 2 * j, 2), vr(S, 2)))
    OP = S + 4
    for i in range(4):
        for hh in (0, 1): p('v_cvt_pk_bf16_f32 v%d, v%d, v%d' % (OP + 2 * i + hh, OD + 8 * hh + i, OD + 8 * hh + 4 + i))
    p('ds_write_b128 v%d, %s\nds_write_b128 v%d, %s offset:256' % (vOW, vr(OP, 4), vOW, vr(OP + 4, 4)))
    p('v_add_u32 v2, %d, v%d\ns_waitcnt lgkmcnt(0)\ns_barrier' % (L_O, vL16))
    for j in range(8): p('ds_read_b128 %s, v2 offset:%d' % (vr(K + 4 * j, 4), 1024 * j))
    gemm_out(4, lambda T, ks: vr(K + 16 * T + 4 * ks, 4), lambda T, t, ks: wreg(16 * t + 4 * ks), sPA)
    signal(0)
    await_(0, 32)
    reduce(sRowA, False)
    p('s_cmp_lg_u32 s12, 0\ns_cbranch_scc1 ' + L('L_p_ln'))
    gather()
    R, U = WK, WK + 10
    for k in range(5):
        rnd(R + 2 * k); unpack2(MODV + k, U); unpack2(XR + k, U + 2)
        p('v_pk_fma_f32 %s, %s, %s, %s' % (vr(X1 + 2 * k, 2), vr(R + 2 * k, 2), vr(U, 2), vr(U + 2, 2)))
        rnd(X1 + 2 * k)
    p('v_pk_add_f32 %s, %s, %s' % (vr(U, 2), vr(X1, 2), vr(X1 + 2, 2)))
    for k in (2, 3, 4): p('v_pk_add_f32 %s, %s, %s' % (vr(U, 2), vr(U, 2), vr(X1 + 2 * k, 2)))
    p('v_add_f32 v%d, v%d, v%d' % (U, U, U + 1))
    wavesum(U, U + 1)
    p('v_mul_f32 v%d, %s, v%d' % (U, f2hex(-1.0 / 640), U))
    for k in range(5): p('v_pk_add_f32 %s, %s, %s op_sel_hi:[1,0]' % (vr(R + 2 * k, 2), vr(X1 + 2 * k, 2), vr(U, 2)))
    p('v_pk_mul_f32 %s, %s, %s' % (vr(U, 2), vr(R, 2), vr(R, 2)))
    for k in range(1, 5): p('v_pk_fma_f32 %s, %s, %s, %s' % (vr(U, 2), vr(R + 2 * k, 2), vr(R + 2 * k, 2), vr(U, 2)))
    p('v_add_f32 v%d, v%d, v%d' % (U, U, U + 1))
    wavesum(U, U + 1)
    p('v_mov_b32 v%d, %s\nv_fmac_f32 v%d, %s, v%d\nv_rsq_f32 v%d, v%d' % (U + 1, f2hex(1e-5), U + 1, f2hex(1.0 / 640), U, U, U + 1))
    for k in range(5):
        unpack2(MODV + 10 + k, U + 2); unpack2(MODV + 5 + k, U + 4)
        p('v_pk_add_f32 %s, %s, 1.0 op_sel_hi:[1,0]' % (vr(U + 2, 2), vr(U + 2, 2)))
        p('v_pk_mul_f32 %s, %s, %s op_sel_hi:[1,0]' % (vr(R + 2 * k, 2), vr(R + 2 * k, 2), vr(U, 2)))
        p('v_pk_fma_f32 %s, %s, %s, %s' % (vr(U + 2, 2), vr(R + 2 * k, 2), vr(U + 2, 2), vr(U + 4, 2)))
        p('v_cvt_pk_bf16_f32 v%d, v%d, v%d' % (U + 6 + k, U + 2, U + 3))
        p('s_add_u32 s%d, s%d, %d\nbuffer_store_dword v%d, v%d, s[4:7], s%d offen%s' % (sT, sH2, 8192 * k, U + 6 + k, vH2, sT, st))
    p(L('L_p_ln') + ':')
    signal(1)
    p('s_mov_b32 s92, s%d' % sXo)
    p('s_add_u32 s%d, s%d, 6' % (sSeg, sSeg))
    seg_addrs()
    p('s_cmp_ge_u32 s13, 27\ns_cbranch_scc1 ' + L('L_p_noffn'))
    await_(1, 32)
    p('s_mul_i32 s%d, s12, 10240' % sT3)
    for g0 in (0, 4, 8):
        p('s_add_u32 m0, s%d, %d\ns_add_u32 s%d, s%d, m0' % (sT3, g0 * 1024, sT, sH2))
        for i in range(g0, min(g0 + 4, 10)):
            p('buffer_load_dwordx4 v%d, s[4:7], s%d offen offset:%d sc1 lds' % (vL16, sT, (i - g0) * 1024))
    p('s_waitcnt vmcnt(0)\ns_barrier')
    H, G = WK, WK + 24
    rd = lambda ks, T: 'ds_read_b128 %s, v%d offset:%d' % (vr(H + 8 * (ks % 3) + 4 * T, 4), vL16, ks * 2048 + T * 1024)
    for ks in (0, 1):
        for T in (0, 1): p(rd(ks, T))
    fetch_inputs()
    for ks in range(20):
        for T in (0, 1):
            for m in (0, 1):
                a = vr(G + 8 * T + 4 * m, 4)
                p('v_mfma_f32_16x16x32_bf16 %s, %s, %s, %s' % (a, wreg(160 + 8 * ks + 4 * m), vr(H + 8 * (ks % 3) + 4 * T, 4), a if ks else '0'))
                if m == 0 and ks + 2 < 20: p(rd(ks + 2, T))
    for T in (0, 1):
        g = G + 8 * T
        for j in range(0, 8, 2): rnd(g + j)
        for i in range(4): p('v_max_f32 v%d, 0, v%d\nv_mul_f32 v%d, v%d, v%d' % (g + i, g + i, g + i, g + i, g + 4 + i))
        p('v_cvt_pk_bf16_f32 v%d, v%d, v%d\nv_cvt_pk_bf16_f32 v%d, v%d, v%d' % (g, g, g + 1, g + 1, g + 2, g + 3))
        p('ds_write_b64 v%d, %s offset:%d' % (vAW, vr(g, 2), 2048 * T))
    p('v_add_u32 v2, %d, v%d\ns_waitcnt lgkmcnt(0)\ns_barrier' % (L_ACT, vL16))
    gen_down(p, gemm_out, WK + 52)
    signal(2)
    p('s_branch ' + L('L_p_fin'))
    p(L('L_p_noffn') + ':')
    fetch_inputs()
    p(L('L_p_fin') + ':')
    await_(2, 27)
    reduce(sRowB, True)
    p('s_cmp_lg_u32 s12, 0\ns_cbranch_scc1 ' + L('L_p_nx'))
    gather()
    for k in range(5):
        rnd(R + 2 * k); unpack2(MODV + 15 + k, U)
        p('v_pk_fma_f32 %s, %s, %s, %s' % (vr(U, 2), vr(R + 2 * k, 2), vr(U, 2), vr(X1 + 2 * k, 2)))
        if cfg.get('perturb') and k == 0: p('v_add_f32 v%d, %s, v%d' % (U, f2hex(cfg['perturb']), U))
        p('v_cvt_pk_bf16_f32 v%d, v%d, v%d' % (U + 2 + k, U, U + 1))
        p('buffer_store_dword v%d, v%d, %s, s92 offen offset:%d' % (U + 2 + k, vL4, srd(sOut), 256 * k))
    p(L('L_p_nx') + ':')
    p('s_add_u32 s%d, s%d, 1\ns_cmp_lt_u32 s%d, 64\ns_cbranch_scc1 %s' % (sIt, sIt, sSeg, L('L_p_loop')))
    p('s_branch L_end')


def gen_down(p, gemm_out, AF):
    BS = AF + 8
    rdB = lambda n: 'ds_read_b128 %s, v%d offset:%d' % (vr(BS + 4 * (n & 1), 4), vWD, (n % 20) * 1024)
    rdA = lambda T: ['ds_read_b128 %s, v2 offset:%d' % (vr(AF + 4 * ks, 4), 2048 * T + 1024 * ks) for ks in (0, 1)]
    for l in rdA(0): p(l)
    p(rdB(0)); p(rdB(1))

    def pre(T, t, ks):
        n = 20 * T + 2 * t + ks
        r = [rdB(n + 2)] if n + 2 < 40 else []
        if n == 19: r += rdA(1)
        return r
    gemm_out(2, lambda T, ks: vr(AF + 4 * ks, 4), lambda T, t, ks: vr(BS + 4 * ks, 4), sPB, pre)
```

```python
from layout import *

sX, sC, sWm, sW, sWo, sWg, sWu, sWd, sOut = 16, 20, 24, 28, 32, 36, 40, 44, 48
sY, sWi, sBud, sSel0, sSel1, sT, sT2, sT3 = 52, 53, 54, 56, 57, 58, 59, 60
DBG_RDY1, DBG_RDY2 = 192, 224
vL = 0
vL16 = 1
RO8 = 'row_ror:8 row_mask:0xf bank_mask:0xf'
RO4 = 'row_ror:4 row_mask:0xf bank_mask:0xf'


def vr(b, n): return 'v[%d:%d]' % (b, b + n - 1)
def srd(s): return 's[%d:%d]' % (s, s + 3)


def xsum(p, r, t, op='add'):
    for sw in ('16', '32'):
        p('v_mov_b32 v%d, v%d\nv_permlane%s_swap_b32 v%d, v%d\nv_%s_f32 v%d, v%d, v%d' % (t, r, sw, r, t, op, r, r, t))


def arrive(p, off):
    l = p.newlabel('L_arr')
    p('''
    s_waitcnt vmcnt(0)
    s_barrier
    s_cmp_lg_u32 s12, 0
    s_cbranch_scc1 {l}
    v_mov_b32 v2, 1
    v_mov_b32 v3, {off}
    s_mov_b64 exec, 1
    buffer_atomic_add v2, v3, s[8:11], 0 offen
    s_mov_b64 exec, -1
    {l}:
    '''.format(l=l, off=off))


def wait_count(p, off, n, bud, v=2, st=sT):
    l = p.newlabel('L_cnt')
    p('''
    v_mov_b32 v{a}, {off}
    {l}:
    s_mov_b64 exec, 1
    buffer_load_dword v{d}, v{a}, s[8:11], 0 offen sc1
    s_mov_b64 exec, -1
    s_sub_u32 s{bud}, s{bud}, 1
    s_cbranch_scc1 L_end
    s_waitcnt vmcnt(0)
    v_readfirstlane_b32 s{st}, v{d}
    s_cmp_eq_u32 s{st}, {n}
    s_cbranch_scc1 {l}x
    s_sleep 8
    s_branch {l}
    {l}x:
    '''.format(l=l, off=off, n=n, bud=bud, a=v + 1, d=v, st=st))


def gen_clear_ctrl(p):
    p('s_lshl_b32 s%d, s%d, 2\ns_add_u32 s%d, s%d, s12\ns_lshl_b32 s%d, s%d, 10' % (sT, sWi, sT, sT, sT, sT))
    for ps in range(3):
        l = p.newlabel('L_clr')
        p('''
        s_cmp_ge_u32 s{t}, {end}
        s_cbranch_scc1 {l}
        s_and_b32 s{t2}, s{t}, 0x170000
        s_cmp_eq_u32 s{t2}, 0x70000
        s_cselect_b32 s{t2}, -1, 0
        s_cmp_ge_u32 s{t}, {mod}
        s_cselect_b32 s{t2}, -1, s{t2}
        v_mov_b32 v{r}, s{t2}
        v_mov_b32 v{r1}, s{t2}
        v_mov_b32 v{r2}, s{t2}
        v_mov_b32 v{r3}, s{t2}
        buffer_store_dwordx4 v[{r}:{r3}], v{l16}, s[4:7], s{t} offen sc1
        {l}:
        s_add_u32 s{t}, s{t}, 0xc0000
        '''.format(t=sT, t2=sT2, end=CTRL_END, mod=WS_MOD, l=l, r=4 + 4 * ps, r1=5 + 4 * ps, r2=6 + 4 * ps, r3=7 + 4 * ps, l16=vL16))


def gen_clear_km(p):
    l = p.newlabel('L_ckm')
    p('''
    s_lshl_b32 s{t}, s{wi}, 2
    s_add_u32 s{t}, s{t}, s12
    s_lshl_b32 s{t}, s{t}, 10
    s_add_u32 s{t}, s{t}, {km}
    v_mov_b64 v[4:5], -1
    v_mov_b64 v[6:7], -1
    {l}:
    buffer_store_dwordx4 v[4:7], v{l16}, s[4:7], s{t} offen sc1
    s_add_u32 s{t}, s{t}, 0xc0000
    s_cmp_lt_u32 s{t}, {end}
    s_cbranch_scc1 {l}
    '''.format(t=sT, wi=sWi, km=WS_KM, l=l, l16=vL16, end=WS_KM + 0x800000))
    arrive(p, DBG_RDY2)


def gen_mod_loads(p, W, Cv):
    p('''
    v_lshrrev_b32 v2, 2, v{l}
    s_mul_i32 s{t}, s12, 160
    v_add_u32 v2, s{t}, v2             ; row
    v_lshlrev_b32 v3, 1, v2
    v_mul_u32_u24 v2, 7680, v2
    v_and_b32 v{w}, 3, v{l}
    v_lshl_add_u32 v2, v{w}, 4, v2
    s_mul_i32 s{t}, s{q}, 1280
    s_lshl_b32 s{t2}, s13, 6
    s_add_u32 s{t}, s{t}, s{t2}
    '''.format(l=vL, t=sT, t2=sT2, q=sT3, w=W))
    for i in range(10): p('buffer_load_ushort v%d, v3, %s, 0 offen offset:%d' % (Cv + i, srd(sC), 32 * i))
    for i in range(10):
        p('buffer_load_dwordx4 %s, v2, %s, s%d offen' % (vr(W + 4 * i, 4), srd(sWm), sT))
        p('s_add_u32 s%d, s%d, %d' % (sT, sT, 16 * 7680))


def gen_mod_compute(p, W, Cv, A):
    for i in range(10):
        c = Cv + i
        p('''
        v_lshlrev_b32 v{c}, 16, v{c}
        v_mul_f32 v{t}, 0xbfb8aa3b, v{c}
        v_exp_f32 v{t}, v{t}
        v_add_f32 v{t}, 1.0, v{t}
        v_rcp_f32 v{t}, v{t}
        v_mul_f32 v{c}, v{c}, v{t}
        v_cvt_pk_bf16_f32 v{c}, v{c}, v{c}
        v_and_b32 v{c}, 0xffff0000, v{c}
        '''.format(c=c, t=A + 8))
    for i in range(10):
        for d in range(4):
            w = W + 4 * i + d
            p('v_lshlrev_b32 v%d, 16, v%d\nv_and_b32 v%d, 0xffff0000, v%d' % (A + 8, w, A + 9, w))
            if i == 0: p('v_mul_f32 v%d, v%d, v%d\nv_mul_f32 v%d, v%d, v%d' % (A + 2 * d, A + 8, Cv, A + 2 * d + 1, A + 9, Cv))
            else: p('v_fmac_f32 v%d, v%d, v%d\nv_fmac_f32 v%d, v%d, v%d' % (A + 2 * d, A + 8, Cv + i, A + 2 * d + 1, A + 9, Cv + i))
    for ro in (RO4, RO8):
        for j in range(8): p('v_add_f32_dpp v%d, v%d, v%d %s' % (A + j, A + j, A + j, ro))
    for j in range(8): xsum(p, A + j, A + 8)
    p('''
    s_lshl_b32 s{t}, s12, 7
    v_lshlrev_b32 v2, 5, v{l}
    v_add_u32 v2, s{t}, v2
    s_mov_b64 exec, 15
    ds_write_b128 v2, {a0}
    ds_write_b128 v2, {a1} offset:16
    s_mov_b64 exec, -1
    s_waitcnt lgkmcnt(0)
    s_barrier
    v_and_b32 v2, 15, v{l}
    v_lshlrev_b32 v2, 3, v2
    '''.format(t=sT, l=vL, a0=vr(A, 4), a1=vr(A + 4, 4)))
    for w in range(4): p('ds_read_b64 %s, v2 offset:%d' % (vr(A + 2 * w, 2), 128 * w))
    p('''
    v_pk_add_f32 {a}, {a}, {b}
    v_pk_add_f32 {c}, {c}, {d}
    v_pk_add_f32 {a}, {a}, {c}
    v_cvt_pk_bf16_f32 v{A}, v{A}, v{A1}
    v_min_u32 v{A}, -2, v{A}
    '''.format(a=vr(A, 2), b=vr(A + 2, 2), c=vr(A + 4, 2), d=vr(A + 6, 2), A=A, A1=A + 1))


def gen_mod_store(p, A):
    l = p.newlabel('L_mst')
    p('''
    s_cmp_lg_u32 s12, 0
    s_cbranch_scc1 {l}
    s_mul_i32 s{t}, s{q}, 1280
    s_lshl_b32 s{t2}, s13, 6
    s_add_u32 s{t}, s{t}, s{t2}
    s_add_u32 s{t}, s{t}, {mod}
    v_lshlrev_b32 v2, 2, v{ln}
    s_mov_b64 exec, 0xffff
    buffer_store_dword v{A}, v2, s[4:7], s{t} offen sc1
    s_mov_b64 exec, -1
    {l}:
    '''.format(l=l, t=sT, t2=sT2, q=sT3, mod=WS_MOD, ln=vL, A=A))


def unpack(p, src, lo, hi):
    p('v_lshlrev_b32 v%d, 16, v%d\nv_and_b32 v%d, 0xffff0000, v%d' % (lo, src, hi, src))


def gen_ln1(p, XR):
    XF, SA, CA, T = 80, 160, 200, 8
    for i in range(40): unpack(p, XR + i, XF + 2 * i, XF + 2 * i + 1)
    p('v_pk_add_f32 %s, %s, %s' % (vr(T, 2), vr(XF, 2), vr(XF + 2, 2)))
    for i in range(2, 40): p('v_pk_add_f32 %s, %s, %s' % (vr(T, 2), vr(T, 2), vr(XF + 2 * i, 2)))
    p('v_add_f32 v%d, v%d, v%d' % (T, T, T + 1))
    p('v_add_f32_dpp v%d, v%d, v%d %s' % (T, T, T, RO8))
    xsum(p, T, T + 1)
    p('v_mul_f32 v%d, %s, v%d' % (T, f2hex(-1.0 / 640), T))
    for i in range(40): p('v_pk_add_f32 %s, %s, %s op_sel_hi:[1,0]' % (vr(XF + 2 * i, 2), vr(XF + 2 * i, 2), vr(T, 2)))
    p('v_pk_mul_f32 %s, %s, %s' % (vr(T, 2), vr(XF, 2), vr(XF, 2)))
    for i in range(1, 40): p('v_pk_fma_f32 %s, %s, %s, %s' % (vr(T, 2), vr(XF + 2 * i, 2), vr(XF + 2 * i, 2), vr(T, 2)))
    p('v_add_f32 v%d, v%d, v%d' % (T, T, T + 1))
    p('v_add_f32_dpp v%d, v%d, v%d %s' % (T, T, T, RO8))
    xsum(p, T, T + 1)
    p('v_mov_b32 v%d, %s\nv_fmac_f32 v%d, %s, v%d\nv_rsq_f32 v%d, v%d' % (T + 1, f2hex(1e-5), T + 1, f2hex(1.0 / 640), T, T, T + 1))
    for i in range(40): p('v_pk_mul_f32 %s, %s, %s op_sel_hi:[1,0]' % (vr(XF + 2 * i, 2), vr(XF + 2 * i, 2), vr(T, 2)))
    p('v_lshrrev_b32 v2, 3, v%d\nv_lshlrev_b32 v2, 4, v2\ns_mov_b32 s%d, %d' % (vL, sT, WS_MOD))
    p('L_ln_poll:')
    for i in range(10):
        p('buffer_load_dwordx4 %s, v2, s[4:7], s%d offen offset:%d sc1' % (vr(SA + 4 * i, 4), sT, 128 * i))
        p('buffer_load_dwordx4 %s, v2, s[4:7], s%d offen offset:%d sc1' % (vr(CA + 4 * i, 4), sT, 1280 + 128 * i))
    p('s_sub_u32 s{b}, s{b}, 1\ns_cbranch_scc1 L_end\ns_waitcnt vmcnt(0)'.format(b=sBud))
    p('v_max_u32 v%d, v%d, v%d' % (T, SA, SA + 1))
    for i in range(1, 40): p('v_max3_u32 v%d, v%d, v%d, v%d' % (T, T, SA + 2 * i, SA + 2 * i + 1))
    p('v_cmp_eq_u32 vcc, -1, v%d\ns_cbranch_vccnz L_ln_poll' % T)
    for i in range(40):
        unpack(p, CA + i, T, T + 1); unpack(p, SA + i, T + 2, T + 3)
        p('v_pk_add_f32 %s, %s, 1.0 op_sel_hi:[1,0]' % (vr(T, 2), vr(T, 2)))
        p('v_pk_fma_f32 %s, %s, %s, %s' % (vr(T, 2), vr(XF + 2 * i, 2), vr(T, 2), vr(T + 2, 2)))
        p('v_cvt_pk_bf16_f32 v%d, v%d, v%d' % (XR + i, T, T + 1))
    p('''
    v_lshrrev_b32 v2, 5, v{l}
    v_lshlrev_b32 v2, 11, v2
    v_bfe_u32 v3, v{l}, 3, 2
    v_lshl_add_u32 v2, v3, 8, v2
    v_and_b32 v3, 7, v{l}
    v_lshl_add_u32 v2, v3, 4, v2
    s_sub_u32 s{t}, s{wi}, 128
    s_mul_i32 s{t}, s{t}, 40960
    s_lshr_b32 s{t2}, s12, 1
    s_lshl_b32 s{t2}, s{t2}, 10
    s_add_u32 s{t}, s{t}, s{t2}
    s_and_b32 s{t2}, s12, 1
    s_lshl_b32 s{t2}, s{t2}, 7
    s_add_u32 s{t}, s{t}, s{t2}
    s_add_u32 s{t}, s{t}, {h}
    '''.format(l=vL, t=sT, t2=sT2, wi=sWi, h=WS_H))
    for i in range(10):
        p('buffer_store_dwordx4 %s, v2, s[4:7], s%d offen sc1\ns_add_u32 s%d, s%d, 4096' % (vr(XR + 4 * i, 4), sT, sT, sT))
    p('''
    s_sub_u32 s{t}, s{wi}, 128
    s_lshl_b32 s{t}, s{t}, 2
    s_add_u32 s{t}, s{t}, s12
    s_lshl_b32 s{t}, s{t}, 2
    s_add_u32 s{t}, s{t}, {fh}
    v_mov_b32 v2, 1
    s_waitcnt vmcnt(0)
    s_mov_b64 exec, 1
    buffer_store_dword v2, v{l}, s[4:7], s{t} offen sc1
    s_mov_b64 exec, -1
    '''.format(t=sT, wi=sWi, fh=WS_FH, l=vL))


def wreg(i, n=4):
    return 'a[%d:%d]' % (i, i + n - 1) if i < 256 else vr(192 + i - 256, n)


def put(p, i, hi, lo, sel, tmp):
    if i < 256: p('v_perm_b32 v%d, v%d, v%d, s%d\nv_accvgpr_write_b32 a%d, v%d' % (tmp, hi, lo, sel, i, tmp))
    else: p('v_perm_b32 v%d, v%d, v%d, s%d' % (192 + i - 256, hi, lo, sel))


def pipeline(units, depth, issue, finish):
    for n in range(min(depth - 1, len(units))): issue(units[n], n % depth)
    for n, u in enumerate(units):
        if n + depth - 1 < len(units): issue(units[n + depth - 1], (n + depth - 1) % depth)
        finish(u, n % depth)


def gen_qkv_w(p):
    p('''
    v_lshrrev_b32 v2, 4, v{l}
    v_lshlrev_b32 v2, 16, v2
    v_and_b32 v3, 15, v{l}
    v_lshl_add_u32 v2, v3, 3, v2
    s_and_b32 s{t}, s{y}, 1
    s_lshl_b32 s{t}, s{t}, 3
    s_lshr_b32 s{t2}, s13, 2
    s_add_u32 s61, s{t}, s{t2}          ; head pair
    s_lshl_b32 s{t}, s61, 9
    s_lshl_b32 s{t2}, s12, 7
    s_add_u32 s{t}, s{t}, s{t2}
    v_add_u32 v2, s{t}, v2
    '''.format(l=vL, t=sT, t2=sT2, y=sY))

    def issue(ks, slot):
        for j in range(8):
            p('s_mov_b32 s%d, %d\nbuffer_load_dwordx2 %s, v2, %s, s%d offen' % (sT, (32 * ks + j) * 8192, vr(16 + 16 * slot + 2 * j, 2), srd(sW), sT))

    def finish(ks, slot):
        b = 16 + 16 * slot
        for i4 in range(4):
            for t in range(4):
                put(p, 16 * ks + 4 * t + i4, b + 4 * i4 + 2 + (t >> 1), b + 4 * i4 + (t >> 1), sSel0 + (t & 1), 8 + t)
    pipeline(list(range(20)), 8, issue, finish)


def gen_qkv_loop(p):
    sN, sSrc, sBuf, sDst, sStr, sFlag = 62, 63, 64, 65, 66, 67
    vT, vO, H, ACC, OUT = 2, 3, 8, 32, 64
    p('''
    v_lshrrev_b32 v2, 2, v{l}
    v_lshlrev_b32 v2, 6, v2
    v_and_b32 v3, 3, v{l}
    v_lshl_add_u32 v2, v3, 2, v2
    s_and_b32 s{t}, s13, 3
    s_lshl_b32 s{t}, s{t}, 4
    s_add_u32 s{t}, s{t}, {fh}
    L_q_hw:
    buffer_load_dword v3, v2, s[4:7], s{t} offen sc1
    s_sub_u32 s{b}, s{b}, 1
    s_cbranch_scc1 L_end
    s_waitcnt vmcnt(0)
    v_cmp_ne_u32 vcc, 1, v3
    s_cbranch_vccz L_q_hok
    s_sleep 4
    s_branch L_q_hw
    L_q_hok:
    s_and_b32 s{t}, s13, 3
    s_mul_i32 s{src}, s{t}, 40960
    s_mul_i32 s{buf}, s12, 10240
    s_add_u32 s{src}, s{src}, s{buf}
    s_add_u32 s{src}, s{src}, {h}
    s_lshl_b32 s{fl}, s61, 8
    s_lshl_b32 s{t2}, s{t}, 6
    s_add_u32 s{fl}, s{fl}, s{t2}
    s_lshr_b32 s{t2}, s{y}, 1
    s_lshl_b32 s{t2}, s{t2}, 4
    s_add_u32 s{fl}, s{fl}, s{t2}
    s_add_u32 s{fl}, s{fl}, {fq}
    ; destination: (segment*32 + head) << sh, sh = 13 for Q, 14 for K/V
    s_cmp_ge_u32 s{y}, 4
    s_cselect_b32 s{t3}, 13, 14
    s_mov_b32 s{dst}, {kv}
    s_cselect_b32 s{dst}, {q}, s{dst}
    s_lshl_b32 s{str}, 128, s{t3}
    s_lshl_b32 s{t}, s{t}, 5
    s_lshl_b32 s{t2}, s61, 1
    s_add_u32 s{t}, s{t}, s{t2}
    s_lshr_b32 s{t2}, s12, 1
    s_add_u32 s{t}, s{t}, s{t2}
    s_lshl_b32 s{t}, s{t}, s{t3}
    s_add_u32 s{dst}, s{dst}, s{t}
    s_mov_b32 s{n}, 0
    v_mov_b32 v{vt}, v{l16}
    '''.format(l=vL, t=sT, t2=sT2, t3=sT3, fh=WS_FH, b=sBud, src=sSrc, buf=sBuf, h=WS_H, fl=sFlag, y=sY, fq=WS_FQKV, dst=sDst,
               q=WS_Q, kv=WS_KV, str=sStr, n=sN, vt=vT, l16=vL16))

    def dma():
        for g0 in (0, 4, 8):
            p('s_add_u32 m0, s%d, %d\ns_add_u32 s%d, s%d, %d' % (sBuf, g0 * 1024, sT, sSrc, g0 * 1024))
            for i in range(g0, min(g0 + 4, 10)):
                p('buffer_load_dwordx4 v%d, s[4:7], s%d offen offset:%d sc1 lds' % (vL16, sT, (i - g0) * 1024))
        p('s_add_u32 s%d, s%d, %d\ns_xor_b32 s%d, s%d, 0x10000' % (sSrc, sSrc, 4 * 40960, sBuf, sBuf))

    def flag():
        l = p.newlabel('L_qf')
        p('''
        s_barrier
        s_cmp_lg_u32 s12, 0
        s_cbranch_scc1 {l}
        v_mov_b32 v4, s{n}
        s_mov_b64 exec, 1
        buffer_store_dword v4, v{ln}, s[4:7], s{fl} offen sc1
        s_mov_b64 exec, -1
        {l}:
        '''.format(l=l, n=sN, ln=vL, fl=sFlag))
    dma()
    p('s_waitcnt vmcnt(0)')
    p('s_lshr_b32 s%d, s%d, 1\ns_cmp_eq_u32 s%d, 1\ns_cbranch_scc1 L_q_v' % (sT, sY, sT))
    for isv in (0, 1):
        tag = 'v' if isv else 'k'
        if isv:
            p('L_q_v:')
            p('s_and_b32 s{t}, s12, 1\ns_lshl_b32 s{t}, s{t}, 10\ns_add_u32 s{t}, s{t}, 2048\nv_add_u32 v{o}, s{t}, v{l16}'.format(t=sT, o=vO, l16=vL16))
        else:
            p('''
            s_and_b32 s{t}, s12, 1
            s_lshl_b32 s{t}, s{t}, 1
            v_lshrrev_b32 v4, 5, v{l}
            v_add_u32 v4, s{t}, v4             ; wq
            s_sub_u32 s{t3}, s{t3}, 2
            v_lshlrev_b32 v4, s{t3}, v4
            v_bfe_u32 v5, v{l}, 4, 1
            v_lshl_add_u32 v4, v5, 9, v4
            v_and_b32 v5, 15, v{l}
            v_lshl_add_u32 v{o}, v5, 4, v4
            '''.format(t=sT, t3=sT3, l=vL, o=vO))
        p('L_q_loop%s:' % tag)
        p('s_waitcnt vmcnt(4)\ns_barrier')
        rd = lambda ks, T: 'ds_read_b128 %s, v%d offset:%d' % (vr(H + 8 * (ks % 3) + 4 * T, 4), vT, ks * 2048 + T * 1024)
        for ks in (0, 1):
            for T in (0, 1): p(rd(ks, T))
        dma()
        for ks in range(20):
            for T in (0, 1):
                for t in range(4):
                    a = vr(ACC + 16 * T + 4 * t, 4); h = vr(H + 8 * (ks % 3) + 4 * T, 4); w = wreg(16 * ks + 4 * t)
                    p('v_mfma_f32_16x16x32_bf16 %s, %s, %s, %s' % (a, h if isv else w, w if isv else h, a if ks else '0'))
                    if t == 0 and ks + 2 < 20: p(rd(ks + 2, T))
            if ks == 9:
                p('s_waitcnt vmcnt(10)'); flag()
        p('s_add_u32 s%d, s%d, 1\nv_xor_b32 v%d, 0x10000, v%d' % (sN, sN, vT, vT))
        for k in range(4):
            o = OUT + 4 * k
            if isv:
                for T in (0, 1):
                    for hh in (0, 1):
                        a = ACC + 16 * T + 4 * k + 2 * hh
                        p('v_cvt_pk_bf16_f32 v%d, v%d, v%d' % (o + 2 * T + hh, a, a + 1))
                p('s_add_u32 s%d, s%d, %d\nbuffer_store_dwordx4 %s, v%d, s[4:7], s%d offen sc1' % (sT, sDst, 4096 * k, vr(o, 4), vO, sT))
            else:
                T, u = k >> 1, k & 1
                for ii in (0, 1):
                    for hh in (0, 1):
                        a = ACC + 16 * T + 8 * hh + 2 * u + ii
                        p('v_cvt_pk_bf16_f32 v%d, v%d, v%d' % (o + 2 * ii + hh, a, a + 4))
                p('buffer_store_dwordx4 %s, v%d, s[4:7], s%d offen offset:%d sc1' % (vr(o, 4), vO, sDst, T * 1024 + u * 256))
        p('s_add_u32 s%d, s%d, s%d\ns_cmp_lt_u32 s%d, 16\ns_cbranch_scc1 L_q_loop%s' % (sDst, sDst, sStr, sN, tag))
        if not isv: p('s_branch L_q_done')
    p('L_q_done:')
    p('s_waitcnt vmcnt(0)')
    flag()


def gen_worker(p, cfg):
    srds = ((sX, 0, 2621440), (sC, 88, 1280), (sWm, 96, 4915200), (sWo, 40, 5242880), (sWg, 64, 2211840), (sWu, 72, 2211840),
            (sWd, 80, 2211840), (sOut, 104, 2621440))
    for sr, off, size in srds: p('s_load_dwordx2 s[%d:%d], s[0:1], %d' % (sr, sr + 1, off))
    p('s_load_dwordx4 s[60:63], s[0:1], 16\ns_load_dwordx2 s[64:65], s[0:1], 32')
    p('''
    s_sub_u32 s{y}, s14, 2
    s_lshl_b32 s{wi}, s{y}, 5
    s_add_u32 s{wi}, s{wi}, s13
    s_mov_b32 s{b}, 1000000
    s_mov_b32 s{s0}, 0x05040100
    s_mov_b32 s{s1}, 0x07060302
    v_lshlrev_b32 v{l16}, 4, v{l}
    s_waitcnt lgkmcnt(0)
    s_cmp_ge_u32 s{y}, 2
    s_cselect_b64 s[{w}:{w1}], s[64:65], s[62:63]
    s_cmp_ge_u32 s{y}, 4
    s_cselect_b64 s[{w}:{w1}], s[60:61], s[{w}:{w1}]
    '''.format(y=sY, wi=sWi, b=sBud, s0=sSel0, s1=sSel1, l16=vL16, l=vL, w=sW, w1=sW + 1))
    for sr, off, size in srds + ((sW, 0, 5242880),): p('s_mov_b32 s%d, %d\ns_mov_b32 s%d, 0x20000' % (sr + 2, size, sr + 3))
    gen_clear_ctrl(p)
    p('s_cmp_lt_u32 s%d, 4\ns_cbranch_scc1 L_w_kv' % sY)
    XR = 40
    p('''
    v_and_b32 v2, 7, v{l}
    v_mul_u32_u24 v2, 1280, v2
    v_lshrrev_b32 v3, 3, v{l}
    v_lshl_add_u32 v2, v3, 4, v2
    s_sub_u32 s{t}, s{wi}, 128
    s_lshl_b32 s{t}, s{t}, 2
    s_add_u32 s{t}, s{t}, s12
    s_mul_i32 s{t}, s{t}, 10240
    '''.format(l=vL, t=sT, wi=sWi))
    for i in range(10): p('buffer_load_dwordx4 %s, v2, %s, s%d offen offset:%d' % (vr(XR + 4 * i, 4), srd(sX), sT, 128 * i))
    p('s_sub_u32 s%d, s%d, 4\ns_cmp_ge_u32 s13, 20\ns_cbranch_scc1 L_w_nomod' % (sT3, sY))
    gen_mod_loads(p, 80, 120)
    arrive(p, DBG_RDY1)
    gen_mod_compute(p, 80, 120, 16)
    wait_count(p, DBG_RDY1, 192, sBud)
    gen_mod_store(p, 16)
    p('s_branch L_w_ln\nL_w_nomod:')
    arrive(p, DBG_RDY1)
    wait_count(p, DBG_RDY1, 192, sBud)
    p('L_w_ln:')
    gen_ln1(p, XR)
    gen_clear_km(p)
    p('s_branch L_w_w\nL_w_kv:')
    arrive(p, DBG_RDY1)
    p('L_w_w:')
    gen_qkv_w(p)
    p('s_cmp_ge_u32 s%d, 4\ns_cbranch_scc1 L_w_q2' % sY)
    gen_clear_km(p)
    wait_count(p, DBG_RDY1, 192, sBud)
    p('L_w_q2:')
    gen_qkv_loop(p)
    p('s_cmp_ge_u32 s%d, 4\ns_cbranch_scc1 L_w_post\ns_cmp_ge_u32 s13, 20\ns_cbranch_scc1 L_w_post' % sY)
    p('s_add_u32 s%d, s%d, 2' % (sT3, sY))
    gen_mod_loads(p, 80, 120)
    gen_mod_compute(p, 80, 120, 16)
    gen_mod_store(p, 16)
    p('L_w_post:')
    if cfg.get('nopost'): p('s_branch L_end')
    else:
        import post
        post.gen_post(p, cfg)
```

```python
import sys
from asmgen import Prog
from layout import *
import chain, worker
NAME = 'adaLN_cond__memory_aug_recurrent_mem_tr__glu_gated_reglu__prompt'
def body(cfg):
    p = Prog()
    p('''
    s_cmp_ge_u32 s2, 256
    s_cbranch_scc1 L_exit
    s_load_dwordx4 s[16:19], s[0:1], 112
    s_getreg_b32 s14, hwreg(HW_REG_XCC_ID)
    s_and_b32 s14, s14, 7
    v_lshrrev_b32 v1, 6, v0
    v_readfirstlane_b32 s12, v1
    v_and_b32 v0, 63, v0
    ; ticket word: dies 0,1 in the first line of d_debug, the others in the second
    s_lshl_b32 s15, s14, 6
    s_lshl_b32 s20, s14, 2
    s_add_u32 s20, s20, 120
    s_cmp_lt_u32 s14, 2
    s_cselect_b32 s15, s15, s20
    v_mov_b32 v2, 0
    v_mov_b32 v3, 1
    s_waitcnt lgkmcnt(0)
    s_mov_b32 s4, s18
    s_mov_b32 s5, s19
    s_mov_b32 s6, %d
    s_mov_b32 s7, 0x20000
    s_mov_b32 s8, s16
    s_mov_b32 s9, s17
    s_mov_b32 s10, 256
    s_mov_b32 s11, 0x20000
    s_cmp_lg_u32 s12, 0
    s_cbranch_scc1 L_noticket
    s_mov_b64 exec, 1
    buffer_atomic_add v3, v2, s[8:11], s15 offen sc0
    s_waitcnt vmcnt(0)
    ds_write_b32 v2, v3
    s_waitcnt lgkmcnt(0)
    s_mov_b64 exec, -1
    L_noticket:
    s_barrier
    ds_read_b32 v3, v2
    s_waitcnt lgkmcnt(0)
    v_readfirstlane_b32 s13, v3
    s_cmp_ge_u32 s13, 32
    s_cbranch_scc1 L_end
    s_barrier
    s_cmp_ge_u32 s14, 2
    s_cbranch_scc0 L_chain
    ''' % WS_SIZE)
    worker.gen_worker(p, cfg)
    p('L_end:\ns_waitcnt vmcnt(0) lgkmcnt(0)')
    if cfg.get('tend'): cfg['tend'](p)
    p('L_exit:\ns_endpgm')
    p('L_chain:')
    c = dict(cfg); c['flags'] = True
    def go(p):
        worker.wait_count(p, worker.DBG_RDY1, 192, chain.sBudget, 26, 40)
        worker.wait_count(p, worker.DBG_RDY2, 192, chain.sBudget, 26, 40)
    c['wait_go'] = go
    chain.gen_chain(p, c)
    return p.finalize(cfg.get('verbose', False))
def full(cfg):
    ref = open('cdna_kernels/%s.s.ref' % NAME).read().split('\n')
    head = [l for l in ref if l.startswith(';') and '@launch' not in l and 'Override launch' not in l and 'grid=ceil' not in l]
    out = '\n'.join(head) + '\n; @launch grid=(256,1,1) block=(256,1,1) lds=163840\n'
    out += '''.amdgcn_target "amdgcn-amd-amdhsa--gfx950"
.text
.globl {n}_kernel
.p2align 8
.type {n}_kernel,@function
{n}_kernel:
'''.format(n=NAME)
    out += body(cfg)
    out += '''.section .rodata,"a"
.p2align 6
.amdhsa_kernel {n}_kernel
  .amdhsa_next_free_vgpr 512
  .amdhsa_next_free_sgpr 102
  .amdhsa_accum_offset 256
  .amdhsa_group_segment_fixed_size 0
  .amdhsa_kernarg_size 128
  .amdhsa_user_sgpr_count 2
  .amdhsa_user_sgpr_kernarg_segment_ptr 1
  .amdhsa_system_sgpr_workgroup_id_x 1
  .amdhsa_float_denorm_mode_32 3
.end_amdhsa_kernel
'''.format(n=NAME)
    return out
if __name__ == '__main__':
    cfg = eval(sys.argv[1]) if len(sys.argv) > 1 else {}
    cfg['verbose'] = True
    dst = sys.argv[2] if len(sys.argv) > 2 else 'cdna_kernels/%s.s' % NAME
    open(dst, 'w').write(full(cfg))
```

```python
from layout import *

vL16, vIdx, vAw, vA8, vLW, vSW, vSR, vSR1, vOA, vR2, vPerm, vRA, vRB, vR1, vJunk = 0, 1, 2, 3, 4, 5, 6, 7, 8, 9, 10, 12, 13, 14, 15
ACC, AV, ST0, ST1, ST2, AA, VACC, AK = 16, 32, 40, 48, 56, 64, 84, 88
sWq, sWk, sWv, sWo, sMem = 16, 20, 24, 28, 32
sB = 36
sPart = 42
sLine = 43
sPiece = 47
sRed = 48
sStep = 49
sTag = 50
sTagAdd = 51
sMask = 52
sRes = 53
sArm = 54
sCons = 55
sPartG2 = 56
sHopB = 57
sKMb = 58
sPar = 81
sTwL = 59
sVtw = 60
sKoff = 61
sVoff = 62
sKM = 63
sVM = 64
sScale = 34
sBudget = 66
sStep1 = 67
mC8 = 68
mC8G01 = 70
mC8G23 = 72
mKM = 74
mEven = 76
sSel0, sSel1, sSelV = 53, 54, 55
sNot = 78
sFlagKV = 80
sNeed = 3
sFlagA = 15
sHint = 32
sHintW = 33
mHint = 34
sOne = 36

LDS_MEM, LDS_O, LDS_SC, LDS_SEL, LDS_W = 0, 0, 10240, 15360, 16384
NL = 18


def vr(b, n): return 'v[%d:%d]' % (b, b + n - 1)


QK = (('q', 0), ('k', 0), ('q', 1), ('k', 1))


def plan(cfg):
    border = []
    qk = lambda s, buf: [((m, s, t), buf) for m, t in QK]
    for s in (0, 1): border += qk(s, s) + [(('v', s), s)]
    border += [(('v', 8), 2), (('v', 2), 3), (('v', 4), 4), (('v', 9), 0)] + qk(8, 2) + [(('v', 6), 1)]
    border += [(('v', 7), 3), (('v', 5), 4), (('v', 3), 0)]
    border += qk(6, 1) + qk(7, 3) + qk(5, 4) + qk(3, 0)
    for m, t in QK: border += [((m, s, t), buf) for s, buf in ((2, 2), (4, 1), (9, 3))]
    horder = [('o', b, 0) for b in (4, 0, 1, 2, 3)]
    for b in (4, 0, 1, 2, 3): horder += [('o', b, j) for j in (1, 2, 3)]
    where = {}
    n = 0
    for i, st in zip(cfg.get('lb', (0, 1, 2, 17, 22, 25, 28, 31, 34, 38, 41, 44)), [ST0, ST1, ST2] * 4):
        where[border[i][0]] = ('l', n, st); n += 1
    for i, st in zip(cfg.get('lh', (0, 1, 2, 12, 14, 16)), [HS0, HS1, HS2] * 2):
        where[horder[i]] = ('l', n, st); n += 1
    assert n == NL
    res = ['v%d' % (96 + 8 * i) for i in range(20)] + ['a%d' % (8 * i) for i in range(32)]
    for f in [x[0] for x in border] + horder:
        if f not in where:
            r = res.pop(0); where[f] = ('r', r[0], int(r[1:]))
    assert not res, res
    return border, horder, where


HACC = AA
HS0, HS1, HS2 = ST0, ST1, ST2
OA = ACC


def breg(w):
    if w[0] == 'r': return '%s[%d:%d]' % (w[1], w[2], w[2] + 7)
    return vr(w[2], 8)


def ld_stage(w):
    return ['ds_read_b128 %s, v%d offset:%d' % (vr(w[2] + 4 * h, 4), vLW, w[1] * 2048 + h * 1024) for h in (0, 1)]


def nops(n):
    r = []
    while n > 0:
        k = min(n, 16); r.append('s_nop %d' % (k - 1)); n -= k
    return '\n'.join(r)


def gen_chain(p, cfg):
    border, horder, where = plan(cfg)
    stamp = cfg.get('stamp', False)
    flags = cfg.get('flags', False)
    nst = [0]
    tm = cfg.get('twmode', 0)

    trace = cfg.get('trace')
    tnames = cfg.setdefault('tnames', [])
    TP = list(range(82, 102, 2)) + list(range(16, 28, 2))

    def TS(name):
        if not trace: return []
        r = TP[len(tnames)]; tnames.append(name)
        return ['.long 0x%08x' % (0xc0900000 | (r << 6)), '.long 0']

    def T(name):
        for l in TS(name): p(l)

    def ST(name):
        T(name)
        if stamp and (stamp is True or stamp == 1 or name in stamp):
            p('s_memtime s[%d:%d]' % (82 + 2 * nst[0], 83 + 2 * nst[0])); nst[0] += 1

    srds = ((sWq, 16, 5242880), (sWk, 24, 5242880), (sWv, 32, 5242880), (sWo, 40, 5242880), (sMem, 8, 10240))
    for sr, off, size in srds: p('s_load_dwordx2 s[%d:%d], s[0:1], %d' % (sr, sr + 1, off))
    p('s_waitcnt lgkmcnt(0)')
    for sr, off, size in srds: p('s_mov_b32 s%d, %d\ns_mov_b32 s%d, 0x20000' % (sr + 2, size, sr + 3))
    p('''
    v_and_b32 v16, 15, v0
    v_lshrrev_b32 v17, 4, v0
    ; raw-load voffsets: v10/v11 = q,k rows (+1 row), v12/v13 = v rows, v14 = Wo rows
    v_lshlrev_b32 v12, 15, v17
    v_lshl_add_u32 v12, v16, 2, v12
    s_lshl_b32 s40, s13, 8
    s_lshl_b32 s41, s12, 6
    s_add_u32 s41, s40, s41
    v_add_u32 v10, s41, v12
    v_add_u32 v11, 8192, v10
    s_lshl_b32 s41, s14, 7
    s_add_u32 s40, s40, s41
    s_lshr_b32 s41, s12, 1
    s_lshl_b32 s41, s41, 2
    s_add_u32 s40, s40, s41
    v_lshl_add_u32 v12, v16, 2, v12
    v_add_u32 v12, s40, v12
    v_add_u32 v13, 8192, v12
    v_lshrrev_b32 v18, 1, v17
    v_and_b32 v19, 1, v17
    v_xor_b32 v19, s14, v19
    v_lshlrev_b32 v18, 4, v18
    v_lshl_add_u32 v18, v19, 6, v18
    v_mul_u32_u24 v14, 1280, v18
    v_lshl_add_u32 v14, v16, 2, v14
    s_mul_i32 s40, s13, 163840
    s_mul_i32 s41, s12, 320
    s_add_u32 s40, s40, s41
    v_add_u32 v14, s40, v14
    v_add_u32 v15, 5120, v14
    v_lshlrev_b32 v0, 4, v0
    s_mul_i32 s40, s12, %d
    s_add_u32 s40, s40, %d
    v_add_u32 v%d, s40, v0
    s_mov_b32 s%d, 0x05040100
    s_mov_b32 s%d, 0x07060302
    s_bitcmp1_b32 s12, 0
    s_cselect_b32 s%d, s%d, s%d
    ''' % (NL * 2048, LDS_W, vLW, sSel0, sSel1, sSelV, sSel1, sSel0))
    for i in range(4):
        p('s_xor_b32 s40, s12, %d\ns_mul_i32 s%d, s40, %d' % (i, sB + i, 160 * 8192))
        p('s_mul_i32 s%d, s40, 1280' % (56 + i))

    units = []
    of = [('o', b, j) for j in range(4) for b in range(5)]
    for i in range(0, 20, 2): units.append(('o', of[i], of[i + 1]))
    for m in 'qk':
        for s in (0, 2, 1, 3, 4, 6, 5, 7, 8, 9): units.append((m, s))
    for s in (0, 2, 4, 6, 1, 3, 5, 7, 8, 9): units.append(('v', s))

    def issue(u, base):
        if u[0] == 'o':
            for n, f in enumerate(u[1:]):
                for hf in (0, 1):
                    for i2 in (0, 1):
                        r = base + 8 * n + 4 * hf + 2 * i2
                        p('s_add_u32 s40, s%d, %d' % (56 + f[2], (32 * hf + 8 * i2) * 1280 + 64 * f[1]))
                        p('buffer_load_dword v%d, v14, s[%d:%d], s40 offen' % (r, sWo, sWo + 3))
                        p('buffer_load_dword v%d, v15, s[%d:%d], s40 offen' % (r + 1, sWo, sWo + 3))
            return
        sr = {'q': sWq, 'k': sWk, 'v': sWv}[u[0]]
        va = 12 if u[0] == 'v' else 10
        s = u[1]
        for hf in (0, 1):
            for i4 in range(4):
                r = base + 2 * (4 * hf + i4)
                if s < 8:
                    c = (64 * (s & 1) + 16 * hf + 2 * (i4 & 1) + 32 * (i4 >> 1)) * 8192
                    p('s_add_u32 s40, s%d, %d' % (sB + (s >> 1), c))
                else:
                    c = (160 * (2 * (s - 8) + hf) + 128 + 2 * (i4 & 1) + 16 * (i4 >> 1)) * 8192
                    p('s_mov_b32 s40, %d' % c)
                p('buffer_load_dword v%d, v%d, s[%d:%d], s40 offen' % (r, va, sr, sr + 3))
                p('buffer_load_dword v%d, v%d, s[%d:%d], s40 offen' % (r + 1, va + 1, sr, sr + 3))

    def finish(u, base):
        if u[0] == 'o': fr = [(f, [(base + 8 * n + 2 * (j >> 1), sSel0 + (j & 1)) for j in range(8)]) for n, f in enumerate(u[1:])]
        elif u[0] == 'v': fr = [(u, [(base + 2 * j, sSelV) for j in range(8)])]
        else: fr = [(u + (t,), [(base + 2 * j, sSel0 + t) for j in range(8)]) for t in (0, 1)]
        for n, (f, src) in enumerate(fr):
            w = where[f]
            dst = w[2] if (w[0] == 'r' and w[1] == 'v') else 80 + 8 * n
            for j, (r, sel) in enumerate(src): p('v_perm_b32 v%d, v%d, v%d, s%d' % (dst + j, r + 1, r, sel))
            if w[0] == 'r' and w[1] == 'a':
                for j in range(8): p('v_accvgpr_write_b32 a%d, v%d' % (w[2] + j, dst + j))
            elif w[0] == 'l':
                for h in (0, 1): p('ds_write_b128 v%d, %s offset:%d' % (vLW, vr(dst + 4 * h, 4), w[1] * 2048 + h * 1024))
                p('s_waitcnt lgkmcnt(0)')

    if stamp: p('s_memtime s[98:99]')
    D = 4
    for n in range(D - 1): issue(units[n], 16 + 16 * n)
    for n, u in enumerate(units):
        if n + D - 1 < len(units): issue(units[n + D - 1], 16 + 16 * ((n + D - 1) % D))
        finish(u, 16 + 16 * (n % D))
    if stamp: p('s_memtime s[100:101]\ns_waitcnt lgkmcnt(0)\ns_sub_u32 s15, s100, s98')

    p('''
    v_lshrrev_b32 v18, 4, v0           ; lane
    v_and_b32 v16, 15, v18             ; c
    v_lshrrev_b32 v17, 4, v18          ; g
    v_and_b32 v20, 1, v18              ; hb = c&1
    v_mov_b32 v21, 0x44444444
    v_mov_b32 v22, 0xeeeeeeee
    v_cmp_eq_u32 vcc, 1, v20
    v_cndmask_b32 v{idx}, v21, v22, vcc
    s_lshl_b32 s40, s12, 11
    v_add_u32 v{aw}, s40, v0
    s_lshl_b32 s40, s12, 9
    s_add_u32 s41, s40, 8192
    v_lshrrev_b32 v21, 1, v0
    v_add_u32 v{a8}, s41, v21
    v_and_b32 v19, 7, v16              ; c&7
    v_lshrrev_b32 v25, 1, v16          ; m = c>>1
    ; G2 store offset: 128 g + 16 (c&7)
    v_lshlrev_b32 v21, 7, v17
    v_lshl_add_u32 v{sw}, v19, 4, v21
    s_mul_i32 s41, s12, 1536
    s_add_u32 m0, s41, {sc}
    ; o exchange read: 8192 + 512 w + 128 g + 16 m
    v_lshl_add_u32 v22, v25, 4, v21
    s_add_u32 s40, s40, 8192
    v_add_u32 v{oa}, s40, v22
    ; score read: LDS_SC + 512 hb + 256 (m&1) + 64 (m>>1) + 16 g'   (see SCSW)
    v_and_b32 v22, 1, v25
    v_mul_u32_u24 v22, 272, v22
    v_lshrrev_b32 v23, 1, v25
    v_lshl_add_u32 v26, v23, 6, v22    ; 272 (m&1) + 64 (m>>1)
    v_mul_u32_u24 v22, 544, v20
    v_add_u32 v22, v22, v26
    v_lshl_add_u32 v22, v17, 4, v22
    v_add_u32 v{sr}, {sc}, v22
    ; mem-key read: LDS_SC + 1024 + 64 (m>>1) + 4 (4 g + 2 (m&1) + hb)
    v_lshlrev_b32 v22, 6, v23
    v_lshl_add_u32 v22, v17, 4, v22
    v_and_b32 v24, 3, v16
    v_lshl_add_u32 v22, v24, 2, v22
    v_add_u32 v{sr1}, {sc1}, v22
    ; identity for the transposing MFMA: lane (col,g): slot j <-> col == 4g+j
    v_mov_b32 v23, 0x3f80
    v_mov_b32 v24, 0x3f800000
    v_cmp_eq_u32 vcc, 1, v20
    v_cndmask_b32 v23, v23, v24, vcc
    v_lshlrev_b32 v24, 1, v17
    v_cmp_eq_u32 vcc, v25, v24
    v_cndmask_b32 v{pm0}, 0, v23, vcc
    v_add_u32 v24, 1, v24
    v_cmp_eq_u32 vcc, v25, v24
    v_cndmask_b32 v{pm1}, 0, v23, vcc
    '''.format(idx=vIdx, aw=vAw, a8=vA8, sc=LDS_SC, sw=vSW, oa=vOA, sr=vSR, sr1=vSR1, sc1=LDS_SC + 1088, pm0=vPerm, pm1=vPerm + 1))
    p('''
    v_lshrrev_b32 v22, 3, v18
    v_mul_u32_u24 v22, %d, v22
    v_lshl_add_u32 v%d, v19, 4, v22
    v_and_b32 v22, 1, v19
    v_lshl_add_u32 v22, v17, 1, v22
    v_lshrrev_b32 v23, 2, v19
    v_lshl_add_u32 v22, v23, 4, v22
    v_lshlrev_b32 v22, 4, v22
    v_bfe_u32 v23, v19, 1, 1
    v_lshl_add_u32 v%d, v23, 3, v22
    ''' % (HOPA_STRIDE, vRA, vRB))
    p('''
    s_mul_i32 s58, s14, {xs}           ; this twin's hop buffers
    s_add_u32 s{hopb}, s58, {HOPB}
    s_add_u32 s58, s58, {HOPA}
    s_mul_i32 s{part}, s13, {stride}
    s_mul_i32 s40, s12, 2560
    s_add_u32 s{part}, s{part}, s40
    s_add_u32 s{part}, s{part}, s58
    s_add_u32 s{pg2}, s{part}, 2048
    ; reducer line: wave0 -> G1 lines, wave1 -> G0 lines, wave2 (rank<16) -> G2 lines
    s_lshl_b32 s40, s12, 5
    s_add_u32 s40, s40, s13
    s_cmp_lt_u32 s40, 80
    s_cselect_b32 s{red}, 1, 0
    s_cmp_eq_u32 s12, 2
    s_cbranch_scc1 L_c_g2
    s_lshr_b32 s53, s13, 3             ; wsrc
    s_and_b32 s54, s13, 7              ; line within G
    s_cmp_eq_u32 s12, 0
    s_cselect_b32 s55, 1, 0            ; G
    s_lshl_b32 s40, s55, 3
    s_add_u32 s40, s40, s54            ; line in wave block
    s_lshl_b32 s41, s53, 1
    s_add_u32 s41, s41, s55            ; kstep
    s_and_b32 s61, s54, 1              ; x
    s_lshr_b32 s62, s54, 1             ; gsrc
    s_lshl_b32 s63, s55, 6
    s_lshl_b32 s64, s61, 4
    s_add_u32 s63, s63, s64            ; column base in wave block: 64G+16x
    s_mov_b32 s64, 64                  ; second pair +32 columns (bytes)
    s_branch L_c_g3
    L_c_g2:
    s_lshr_b32 s53, s13, 2
    s_and_b32 s53, s53, 3
    s_and_b32 s62, s13, 3              ; gsrc
    s_add_u32 s40, s62, 16
    s_lshr_b32 s41, s53, 1
    s_add_u32 s41, s41, 8
    s_and_b32 s61, s53, 1
    s_mov_b32 s63, 128
    s_mov_b32 s64, 32
    L_c_g3:
    s_mul_i32 s54, s53, 20
    s_add_u32 s40, s40, s54
    s_lshl_b32 s40, s40, 7
    s_add_u32 s{l0}, s40, s58
    s_add_u32 s{l1}, s{l0}, {o1}
    s_add_u32 s{l2}, s{l0}, {o2}
    s_add_u32 s{l3}, s{l0}, {o3}
    s_lshl_b32 s41, s41, 10
    s_lshl_b32 s61, s61, 9
    s_add_u32 s41, s41, s61
    s_lshl_b32 s54, s62, 6
    s_add_u32 s41, s41, s54
    s_add_u32 s{piece}, s41, s{hopb}
    ; mem0 gather: row (2*gsrc+g'), column 160*wsrc + colbase + 2*i
    s_mul_i32 s53, s53, 160
    s_add_u32 s63, s63, s53
    s_lshl_b32 s63, s63, 1
    s_mul_i32 s62, s62, 2560
    s_add_u32 s63, s63, s62
    s_add_u32 s64, s64, s63
    v_mul_u32_u24 v22, 1280, v17
    v_lshl_add_u32 v22, v19, 2, v22
    buffer_load_dword v24, v22, s[32:35], s63 offen
    buffer_load_dword v25, v22, s[32:35], s64 offen
    s_mov_b32 s68, 0x00ff00ff
    s_mov_b32 s69, 0x00ff00ff
    s_mov_b32 s70, 0x00ff00ff
    s_mov_b32 s71, 0
    s_mov_b32 s72, 0x33333333
    s_mov_b32 s73, 0x33333333
    s_cmp_eq_u32 s14, 0
    s_cselect_b32 s74, 0x33333333, 0
    s_cselect_b32 s75, 0, 0x33333333
    s_mov_b32 s76, 0x55555555
    s_mov_b32 s77, 0x55555555
    s_mov_b32 s{mask}, 0x10000
    s_mov_b32 s36, 0x3f80
    s_lshl_b32 s37, s12, 10
    s_add_u32 s37, s37, 6144
    s_mov_b32 s{bud}, 1000000
    ; K/V offsets
    s_lshl_b32 s40, s13, 2
    s_add_u32 s40, s40, s12            ; head*4+wave
    s_lshl_b32 s41, s40, 12
    s_add_u32 s{k}, s41, {KV}
    s_lshl_b32 s53, s14, 10
    s_add_u32 s{v}, s{k}, s53
    s_xor_b32 s{vt}, s{v}, 1024
    ; k_mem / v_mem pieces: (head>>2)*16 KiB + (head&3)*2 KiB + wave*512
    s_lshr_b32 s41, s13, 2
    s_lshl_b32 s41, s41, 14
    s_and_b32 s53, s13, 3
    s_lshl_b32 s53, s53, 11
    s_add_u32 s41, s41, s53
    s_lshl_b32 s53, s12, 9
    s_add_u32 s41, s41, s53
    s_add_u32 s{tws}, s41, {KM}
    s_mov_b32 s{par}, {PAR}
    s_mov_b32 s{step}, 0
    '''.format(xs=WS_HOPX, hopb=sHopB, HOPB=WS_HOPB, HOPA=WS_HOPA, part=sPart, stride=HOPA_STRIDE, pg2=sPartG2,
               red=sRed, l0=sLine, l1=sLine + 1, l2=sLine + 2, l3=sLine + 3, o1=8 * HOPA_STRIDE,
               o2=16 * HOPA_STRIDE, o3=24 * HOPA_STRIDE, piece=sPiece, mask=sMask,
               scale=sScale, sc=f2hex(1.4426950408889634 * 128 ** -0.5), bud=sBudget, k=sKoff, KV=WS_KV, v=sVoff, vt=sVtw,
               KM=WS_KM, tws=sKMb, par=sPar, PAR=cfg.get('twpar', 0) << 13, step=sStep))
    cfg['wait_go'](p)
    p('''
    v_min_u32 v24, -2, v24
    v_min_u32 v25, -2, v25
    s_cmp_eq_u32 s%d, 0
    s_cbranch_scc1 L_c_nom0
    s_add_u32 s40, s%d, %d
    s_mov_b64 exec, s[70:71]
    buffer_store_dwordx2 v[24:25], v%d, s[4:7], s40 offen
    s_mov_b64 exec, -1
    L_c_nom0:
    ''' % (sRed, sPiece, 3 * 16384, vRB))
    p('''
    s_lshl_b32 s40, s14, 12
    s_add_u32 s{h}, s40, {base}
    s_lshl_b32 s40, s13, 2
    s_add_u32 s{hw}, s{h}, s40
    '''.format(h=sHint, hw=sHintW, base=WS_HINT, m=mHint, m1=mHint + 1))
    p('s_mov_b32 s34, {0}\ns_mov_b32 s35, {0}'.format(f2hex(1.4426950408889634 * 128 ** -0.5)))
    flagl = 's_mov_b64 exec, 3\nbuffer_load_dword v%d, v%d, s[4:7], s%d offen sc1\ns_mov_b64 exec, -1' % (vJunk, vL16, sFlagA)
    flagc = 'v_cmp_ge_u32 s[%d:%d], s%d, v%d' % (sNot, sNot + 1, sNeed, vJunk)

    def flag_for(delta):
        p('''
        s_add_u32 s40, s{step}, {d}
        s_lshr_b32 s{need}, s40, 2
        s_and_b32 s40, s40, 3
        s_lshl_b32 s40, s40, 6
        s_add_u32 s{fa}, s{fb}, s40
        '''.format(step=sStep, d=delta, need=sNeed, fa=sFlagA, fb=sFlagKV))

    def flag_spin(name):
        p(name + ':')
        p(flagl)
        p('s_sub_u32 s{bud}, s{bud}, 1\ns_cbranch_scc1 L_end\ns_waitcnt vmcnt(0)'.format(bud=sBudget))
        p(flagc)
        p('s_and_b32 s40, s%d, 3\ns_cbranch_scc1 %s' % (sNot, name))
    if flags:
        p('s_lshr_b32 s40, s13, 1\ns_lshl_b32 s40, s40, 8\ns_add_u32 s%d, s40, %d' % (sFlagKV, WS_FQKV))
        flag_for(0); flag_spin('L_c_kv0'); flag_for(1); p(flagl)
    kl = ['buffer_load_dwordx4 %s, v%d, s[4:7], s%d offen offset:%d sc1' % (vr(AK + 4 * t, 4), vL16, sKoff, t * 1024) for t in (0, 1)]
    for l in kl: p(l)
    p('s_add_u32 s%d, s%d, 0x80000' % (sKoff, sKoff))
    if stamp:
        for i in range(12): p('s_mov_b32 s%d, 0' % (16 + i))
    p('s_waitcnt vmcnt(0) lgkmcnt(0)\ns_barrier')

    acc = {('q', 0): ACC, ('k', 0): ACC + 4, ('q', 1): ACC + 8, ('k', 1): ACC + 12}

    def smf(d, a, w): return 'v_smfmac_f32_16x16x64_bf16 %s, %s, %s, v%d' % (vr(d, 4), vr(a, 4), breg(w), vIdx)

    lbi = [i for i in range(50) if where[border[i][0]][0] == 'l']

    def prefill():
        for i in lbi[:3]:
            for l in ld_stage(where[border[i][0]]): p(l)
        p('''
        s_add_u32 s41, s{step}, 3
        s_and_b32 s41, s41, 3
        s_lshl_b32 s41, s41, 14
        s_add_u32 s{cons}, s41, s{hopb}
        s_add_u32 s{res}, s41, s{piece}
        s_xor_b32 s41, s41, 0x8000
        s_add_u32 s{arm}, s41, s{piece}
        '''.format(step=sStep, cons=sCons, hopb=sHopB, res=sRes, piece=sPiece, arm=sArm))
    EV(p, cfg, 15, 26)
    prefill()
    p('L_c_loop:')
    if cfg.get('tmeas'):
        p('s_cmp_lg_u32 s%d, 3\ns_cbranch_scc1 L_c_tm1\ns_memtime s[28:29]\ns_memrealtime s[78:79]\ns_waitcnt lgkmcnt(0)\nL_c_tm1:' % sStep)
        p('s_cmp_lg_u32 s%d, 63\ns_cbranch_scc1 L_c_tm2\ns_memtime s[30:31]\ns_memrealtime s[40:41]\ns_waitcnt lgkmcnt(0)\ns_sub_u32 s78, s40, s78\nL_c_tm2:' % sStep)
    p(nops(cfg.get('dB', 28 if cfg.get('tmeas') else 40)))
    if trace:
        r = TP[len(tnames)]; tnames.append('rt'); p('.long 0x%08x\n.long 0' % (0xc0940000 | (r << 6)))
    ST('pollB')
    HP = AV
    CK = AV + 4
    early = 'buffer_load_dwordx4 %s, v%d, s[4:7], s%d offen sc1' % (vr(AA, 4), vAw, sCons)
    late = 'buffer_load_dwordx4 %s, v%d, s[4:7], s%d offen offset:1024 sc1' % (vr(AA + 4, 4), vAw, sCons)
    g2l = 'buffer_load_dwordx4 %s, v%d, s[4:7], s%d offen sc1' % (vr(HP, 4), CK + 1, sCons)

    def chk(r):
        return ['v_max_u32 v%d, v%d, v%d' % (CK, r, r + 2), 'v_cmp_eq_u32 vcc, -1, v%d' % CK]
    RAW = lambda l: l + ' ; raw'
    p('s_cmp_lt_u32 s12, 2\ns_cbranch_scc1 L_c_nog2a')
    p('v_add_u32 v%d, s37, v%d' % (CK + 1, vL16))
    p(g2l)
    p('L_c_nog2a:')
    p(early)
    fill = ['s_and_b32 s40, s%d, 1' % sStep, 's_lshl_b32 s%d, s40, 16' % sTagAdd, 's_xor_b32 s%d, s%d, 0x10000' % (sTag, sTagAdd),
            's_add_u32 s%d, s%d, 1' % (sStep1, sStep), 'v_xor_b32 v%d, 2048, v%d' % (vR1, vAw), 'v_xor_b32 v%d, 4096, v%d' % (vR2, vAw)]
    fill += ['v_mov_b64 %s, 0' % vr(r, 2) for r in range(ACC, ACC + 16, 2)]
    dL = cfg.get('dL', 24)
    for l in fill[:dL]: p(l)
    p(nops(dL - len(fill)))
    p(late)
    for l in fill[dL:]: p(l)
    p('s_waitcnt lgkmcnt(0)')
    p('s_cmp_lt_u32 s12, 2\ns_cbranch_scc1 L_c_nog2b\ns_waitcnt vmcnt(2)')
    for l in chk(HP): p(l)
    p('s_cbranch_vccnz L_c_g2retry\nL_c_g2ok:')
    p('ds_write_b128 v%d, %s' % (CK + 1, vr(HP, 4)))
    p('L_c_nog2b:')
    p('L_c_pollB:')
    p('s_waitcnt vmcnt(1)')
    if stamp: p('s_add_u32 s24, s24, 1')
    p('ds_write_b128 v%d, %s' % (vAw, vr(AA, 4)))
    for l in chk(AA): p(l)
    p('v_mov_b64 %s, 0\nv_mov_b64 %s, 0' % (vr(VACC, 2), vr(VACC + 2, 2)))
    p('s_cbranch_vccnz L_c_Bretry')
    T('e0')

    NB = 50
    gaps = {i: [] for i in range(NB)}

    def rdA(buf, s):
        if s >= 8: return 'ds_read_b128 %s, v%d offset:%d' % (vr(AA + 4 * buf, 4), vL16, s * 1024)
        return 'ds_read_b128 %s, v%d offset:%d' % (vr(AA + 4 * buf, 4), vR2 if s in (4, 5) else vR1, (s & 1) * 1024)
    g1 = cfg.get('gbar1', 2)
    gaps[g1] += ['s_waitcnt lgkmcnt(0)', 's_barrier', rdA(2, 8), rdA(3, 2), rdA(4, 4)]
    gaps[4] += ['s_waitcnt vmcnt(0)'] + chk(AA + 4) + [rdA(0, 9), 's_cbranch_vccnz L_c_lateretry', 'L_c_lateok:']
    gaps[5] += ['ds_write_b128 v%d, %s offset:1024' % (vAw, vr(AA + 4, 4)), 'v_xor_b32 v%d, 6144, v%d' % (vR1, vAw)]
    gaps[6] += ['buffer_load_dwordx4 %s, v%d, s[4:7], s%d offen offset:2048 sc1' % (vr(AV, 4), vL16, sVoff)]
    gaps[7] += ['buffer_load_dwordx4 %s, v%d, s[4:7], s%d offen offset:2048 sc1' % (vr(AV + 4, 4), vL16, sVtw)]
    gb = cfg.get('gbar', 8)
    gaps[gb] += ['s_waitcnt lgkmcnt(0)', 's_barrier']
    gaps[9] += [rdA(1, 6)]
    gaps[11] += [rdA(3, 7), 'v_xor_b32 v%d, 2048, v%d' % (vR1, vAw)]
    gaps[12] += [rdA(4, 5)]
    gaps[13] += [rdA(0, 3)]
    gaps[20] += [rdA(2, 2)]
    gaps[25] += [rdA(1, 4)]
    gaps[29] += [rdA(3, 9)]
    gaps[23] += ['v_add_f32 v%d, v%d, v%d' % (VACC, VACC, VACC + 1), 'v_add_f32 v%d, v%d, v%d' % (VACC + 2, VACC + 2, VACC + 3)]
    gaps[24] += ['v_cvt_pk_bf16_f32 v%d, v%d, v%d' % (VACC, VACC, VACC + 2)]
    gaps[14] += ['s_lshr_b32 s40, s%d, 4' % sStep]
    gaps[15] += ['s_lshr_b32 s40, s%d, s40' % sPar]
    gaps[16] += ['s_and_b32 s40, s40, 0x2000']
    gaps[17] += ['s_add_u32 s%d, s%d, s40' % (sVM, sKMb)]
    gaps[18] += ['s_xor_b32 s%d, s%d, 0x2000' % (sKM, sVM)]
    gaps[19] += ['s_lshl_b32 s40, s14, 8']
    gaps[20] += ['s_add_u32 s%d, s%d, s40' % (sVM, sVM)]
    gaps[21] += ['s_xor_b32 s%d, s%d, 256' % (sTwL, sVM)]
    gaps[22] += ['s_add_u32 s%d, s%d, 0x20000' % (sKMb, sKMb), 'v_lshrrev_b32 v%d, 2, v%d' % (vR1, vL16)]
    gaps[24] += ['v_min_u32 v%d, -2, v%d' % (VACC, VACC)]
    gaps[25] = ['buffer_store_dword v%d, v%d, s[4:7], s%d offen sc1' % (VACC, vR1, sVM)]
    gaps[26] += [rdA(1, 4), 'v_mov_b32 v%d, s%d' % (VACC + 1, sStep1)]
    gaps[27] += ['v_mov_b32 v%d, 0' % (VACC + 3)]
    gaps[30] += ['v_lshrrev_b32 v%d, 1, v%d' % (vR2, vL16)]
    gaps[31] += ['v_and_b32 v%d, 0x1e0, v%d' % (vR2, vR2)]
    gaps[32] += ['v_and_or_b32 v%d, v%d, 16, v%d' % (vR2, vL16, vR2)]
    twl = 'buffer_load_dword v%d, v%d, s[4:7], s%d offen sc1' % (VACC + 2, vR1, sTwL)
    shot = lambda k: twl.replace('v%d,' % (VACC + 2), 'v%d,' % SH[k])
    A = ACC
    gaps[42] += ['v_add_f32 v%d, v%d, v%d' % (A, A, A + 1)]
    gaps[43] += ['v_add_f32 v%d, v%d, v%d' % (A + 2, A + 2, A + 3)]
    gaps[44] += ['v_cvt_pk_bf16_f32 v%d, v%d, v%d' % (A + 1, A, A + 2)]
    gaps[45] += ['v_add_f32 v%d, v%d, v%d' % (A + 4, A + 4, A + 5)]
    gaps[46] += ['v_add_f32 v%d, v%d, v%d' % (A + 6, A + 6, A + 7)]
    gaps[47] += ['v_cvt_pk_bf16_f32 v%d, v%d, v%d' % (A, A + 4, A + 6)]
    gaps[48] += ['v_add_f32 v%d, v%d, v%d' % (A + 8, A + 8, A + 9)]
    gaps[49] += ['v_add_f32 v%d, v%d, v%d' % (A + 10, A + 10, A + 11)]

    def place(G, lines, g0, busy=lambda l: any(x.startswith('ds_') or x.startswith('buffer_') for x in l)):
        g = g0
        for l in lines:
            while busy(G[g]): g += 1
            G[g].insert(0, l)
        return g
    for a, b in zip(lbi, lbi[3:]):
        g = place(gaps, ld_stage(where[border[b][0]]), max(a, 10)); assert g < b - 2, (g, b)
    lhi = [i for i in range(20) if where[horder[i]][0] == 'l']
    for a, b in zip(lbi[-3:], lhi[:3]): place(gaps, ld_stage(where[horder[b]]), a)
    pre = []
    if flags:
        gaps[28] += [flagc]
        for g, l in zip(range(29, 34), ['s_add_u32 s40, s%d, 2' % sStep, 's_lshr_b32 s%d, s40, 2' % sNeed, 's_and_b32 s40, s40, 3',
                                        's_lshl_b32 s40, s40, 6', 's_add_u32 s%d, s%d, s40' % (sFlagA, sFlagKV)]): gaps[g] += [l]
        g = [g for g in range(34, 48) if not any(x.startswith('ds_') or x.startswith('buffer_') for x in gaps[g])][0]
        gaps[g] = flagl.split('\n') + gaps[g]
    for g in gaps:
        if not any('exec' in x or 'barrier' in x or 'branch' in x or x.endswith(':') for x in gaps[g]):
            gaps[g].sort(key=lambda x: 0 if x.startswith('s_') else (2 if x.startswith('v_') else 1))
    for i, (f, buf) in enumerate(border):
        l = smf(VACC if f[0] == 'v' else acc[(f[0], f[2])], AA + 4 * buf, where[f])
        p(l)
        if i in (4, 10): T('m%d' % i)
        for l in gaps[i]: p(l)
        if i == 5:
            ST('b5')
            for l in pre: p(l)
    ST('bend')
    p('''
    v_mfma_f32_16x16x16_bf16 v[{a4}:{a7}], v[{a0}:{a1}], v[{pm}:{pm1}], 0
    v_cvt_pk_bf16_f32 v{a9}, v{a8}, v{a10}
    v_add_f32 v{a12}, v{a12}, v{a13}
    v_add_f32 v{a14}, v{a14}, v{a15}
    v_cvt_pk_bf16_f32 v{a8}, v{a12}, v{a14}
    v_mfma_f32_16x16x16_bf16 v[{a12}:{a15}], v[{a8}:{a9}], v[{pm}:{pm1}], 0
    '''.format(pm=vPerm, pm1=vPerm + 1, **{'a%d' % i: A + i for i in range(16)}))
    for r in range(HACC, HACC + 12, 2): p('v_mov_b64 %s, 0' % vr(r, 2))
    for i in range(4): p('v_cvt_pk_bf16_f32 v%d, v%d, v%d' % (HACC + 16 + i, A + 4 + i, A + 12 + i))
    X = vr(HACC + 16, 4)
    p('s_mov_b64 vcc, s[72:73]')
    p('v_mfma_f32_16x16x32_bf16 %s, %s, %s, 0' % (vr(A + 12, 4), X, X))
    p('v_mfma_f32_16x16x32_bf16 %s, %s, %s, 0' % (vr(A + 4, 4), X, vr(AK, 4)))
    p('v_mfma_f32_16x16x32_bf16 %s, %s, %s, 0' % (vr(A + 8, 4), X, vr(AK + 4, 4)))
    p('''
    v_cndmask_b32_dpp v{m0}, v{m1}, v{m0}, vcc quad_perm:[2,3,0,1] row_mask:0xf bank_mask:0xf
    ds_write_addtid_b32 v{m0} offset:1088
    ds_write_addtid_b32 v{a6}
    ds_write_addtid_b32 v{a7} offset:272
    ds_write_addtid_b32 v{a10} offset:544
    ds_write_addtid_b32 v{a11} offset:816
    '''.format(m0=A + 14, m1=A + 15, a6=A + 6, a7=A + 7, a10=A + 10, a11=A + 11))
    p(twl)
    p('v_min_u32 v%d, -2, v%d' % (HACC + 16, HACC + 16))
    kms = 's_mov_b64 exec, s[74:75]\nbuffer_store_dwordx4 %s, v%d, s[4:7], s%d offen sc1\ns_mov_b64 exec, -1' % (X, vR2, sKM)
    p('s_cmp_eq_u32 s%d, 63\ns_cbranch_scc1 L_c_last' % sStep)
    if flags: p('s_and_b32 s40, s%d, 3\ns_cbranch_scc1 L_c_kvspin\nL_c_kvok:' % sNot)
    p('s_waitcnt lgkmcnt(0)\ns_barrier')
    ST('bar2')
    E = HACC + 12
    p('ds_read2st64_b32 %s, v%d offset0:0 offset1:6' % (vr(E, 2), vSR1))
    p('ds_read2st64_b32 %s, v%d offset0:12 offset1:18' % (vr(E + 2, 2), vSR1))
    for w in range(4): p('ds_read_b128 %s, v%d offset:%d' % (vr(A + 4 * w, 4), vSR, w * 1536))
    for l in kl: p(l)
    p(kms)

    def pk(op, d, a, b): return 'v_pk_%s_f32 %s, %s, %s' % (op, vr(d, 2), vr(a, 2), vr(b, 2))
    p(pk('add', E, E, E + 2))
    p(pk('add', A, A, A + 4)); p(pk('add', A + 2, A + 2, A + 6))
    p('v_add_f32 v%d, v%d, v%d' % (A + 4, E, E + 1))
    p(pk('add', A, A, A + 8)); p(pk('add', A + 2, A + 2, A + 10))
    p(pk('add', A, A, A + 12)); p(pk('add', A + 2, A + 2, A + 14))
    T('dend')
    M, TM = A + 6, A + 5
    XP = 'quad_perm:[1,0,3,2] row_mask:0xf bank_mask:0xf'
    PB, PM = E, E + 4
    OD = A + 8
    fm = dict(M=M, M1=M + 1, T=TM, xp=XP, sc=sScale, sc1=sScale + 1, pm=PM, pm1=PM + 1, r1=vR1, r2=vR2, r3=AV + 1, oa=vOA, k=sKoff, v=sVoff, vt=sVtw,
              **{'e%d' % i: A + i for i in range(5)}, **{'p%d' % i: PB + i for i in range(4)},
              **{'w%d' % i: VACC + i for i in range(4)}, **{'V%d' % i: AV + i for i in range(8)},
              **{'o%d' % i: OD + i for i in range(8)})
    p('''
    v_max3_f32 v{M}, v{e0}, v{e1}, v{e4}
    v_max3_f32 v{M}, v{M}, v{e2}, v{e3}
    v_mov_b32 v{pm1}, 0
    v_xor_b32 v{r2}, 1024, v{oa}
    v_max_f32_dpp v{M}, v{M}, v{M} {xp}
    v_mov_b32 v{T}, v{M}
    s_add_u32 s{k}, s{k}, 0x80000
    s_add_u32 s{v}, s{v}, 0x80000
    v_permlane16_swap_b32 v{M}, v{T}
    v_max_f32 v{M}, v{M}, v{T}
    v_mov_b32 v{T}, v{M}
    s_add_u32 s{vt}, s{vt}, 0x80000
    v_permlane32_swap_b32 v{M}, v{T}
    v_max_f32 v{M}, v{M}, v{T}
    v_mul_f32 v{M}, s{sc}, v{M}
    v_pk_fma_f32 v[{e0}:{e1}], v[{e0}:{e1}], s[{sc}:{sc1}], v[{M}:{M1}] op_sel_hi:[1,1,0] neg_lo:[0,0,1] neg_hi:[0,0,1]
    v_pk_fma_f32 v[{e2}:{e3}], v[{e2}:{e3}], s[{sc}:{sc1}], v[{M}:{M1}] op_sel_hi:[1,1,0] neg_lo:[0,0,1] neg_hi:[0,0,1]
    v_exp_f32 v{e0}, v{e0}
    v_exp_f32 v{e1}, v{e1}
    v_exp_f32 v{e2}, v{e2}
    v_exp_f32 v{e3}, v{e3}
    v_cvt_pk_bf16_f32 v{p0}, v{e0}, v{e1}
    v_cvt_pk_bf16_f32 v{p1}, v{e2}, v{e3}
    v_fma_f32 v{e4}, v{e4}, s{sc}, -v{M}
    v_mov_b32_dpp v{p2}, v{p0} {xp}
    v_mov_b32_dpp v{p3}, v{p1} {xp}
    v_exp_f32 v{e4}, v{e4}
    v_add_f32 v{e0}, v{e0}, v{e1}
    v_mfma_f32_16x16x32_bf16 v[{o0}:{o3}], v[{V0}:{V3}], v[{p0}:{p3}], 0
    v_mov_b32_dpp v{T}, v{e4} {xp}
    v_cvt_pk_bf16_f32 v{pm}, v{e4}, v{T}
    v_mfma_f32_16x16x32_bf16 v[{o4}:{o7}], v[{V4}:{V7}], v[{p0}:{p3}], 0
    v_add_f32 v{e2}, v{e2}, v{e3}
    v_add_f32 v{e0}, v{e0}, v{e4}
    v_mfma_f32_16x16x16_bf16 v[{o0}:{o3}], v[{w0}:{w1}], v[{pm}:{pm1}], v[{o0}:{o3}]
    v_add_f32 v{e0}, v{e0}, v{e2}
    v_xor_b32 v{r3}, 1536, v{oa}
    v_mfma_f32_16x16x16_bf16 v[{o4}:{o7}], v[{w2}:{w3}], v[{pm}:{pm1}], v[{o4}:{o7}]
    v_add_f32_dpp v{e0}, v{e0}, v{e0} {xp}
    v_mov_b32 v{T}, v{e0}
    v_cmp_eq_u32 vcc, -1, v{w2}
    v_permlane16_swap_b32 v{e0}, v{T}
    v_add_f32 v{e0}, v{e0}, v{T}
    v_mov_b32 v{T}, v{e0}
    s_cbranch_vccnz L_c_twretry
    L_c_twok:
    s_mov_b64 vcc, s[76:77]
    v_permlane32_swap_b32 v{e0}, v{T}
    v_add_f32 v{e0}, v{e0}, v{T}
    v_rcp_f32 v{e4}, v{e0}
    '''.format(**fm))
    for i in range(4): p('v_cndmask_b32_dpp v%d, v%d, v%d, vcc %s' % (OD + i, OD + 4 + i, OD + i, XP))
    for i in range(2): p('v_pk_mul_f32 %s, %s, %s op_sel_hi:[1,0]' % (vr(OD + 2 * i, 2), vr(OD + 2 * i, 2), vr(A + 4, 2)))
    for i in range(2): p('v_cvt_pk_bf16_f32 v%d, v%d, v%d' % (OA + i, OD + 2 * i, OD + 2 * i + 1))
    p('s_cmp_eq_u32 s12, 3')
    p('ds_write_b64 v%d, %s' % (vA8, vr(OA, 2)))
    ST('owr')
    p('s_cbranch_scc1 L_c_watch')
    hacc = {b: HACC + 4 * n for n, b in enumerate((4, 0, 1, 2, 3))}
    hg = {i: [] for i in range(24)}
    MK, OWN = AV, AV + 4
    hb_ = cfg.get('hbar', 1)
    hg[0] += ['v_mov_b64 %s, 0' % vr(HACC + 14, 2)]
    hg[1] += ['v_mov_b64 %s, 0' % vr(HACC + 16, 2)]
    hg[hb_] += ['s_waitcnt lgkmcnt(0)', 's_barrier', 'ds_read_b128 %s, v%d' % (vr(OA + 4, 4), vR1), 'ds_read_b128 %s, v%d' % (vr(OA + 8, 4), vR2),
                'ds_read_b128 %s, v%d' % (vr(OA + 12, 4), AV + 1)]
    hg[2] += ['v_mov_b64 %s, 0' % vr(HACC + 18, 2)]
    hg[4] += ['v_mov_b32 v%d, 0xfffe0000' % MK]
    RO = 'row_ror:8 row_mask:0xf bank_mask:0xf'
    HV, HA = VACC + 2, VACC + 3
    hintl = 'buffer_load_dword v%d, v%d, s[4:7], s%d offen sc1' % (HV, HA, sHint)

    def first(a): return ['v_add_u32 v%d, s%d, v%d' % (a + 1, sTagAdd, a + 1), 'v_and_or_b32 v%d, v%d, v%d, s%d' % (a + 1, a + 1, MK, sTag),
                          'v_cvt_pk_bf16_f32 v%d, v%d, v%d' % (a, a, a + 1), 'v_cvt_pk_bf16_f32 v%d, v%d, v%d' % (a + 2, a + 2, a + 3)]

    def second(q, a): return ['v_cvt_pk_bf16_f32 v%d, v%d, v%d' % (q + 1, a, a + 1), 'v_cvt_pk_bf16_f32 v%d, v%d, v%d' % (q + 3, a + 2, a + 3)]
    q2, q0, q1 = hacc[4], hacc[0], hacc[2]
    f = first(q2)
    hg[9] += f[:2]; hg[10] += f[2:]
    hg[11] += ['v_mov_b32_dpp v%d, v%d %s' % (q2 + 1, q2, RO), 'v_mov_b32_dpp v%d, v%d %s' % (q2 + 3, q2 + 2, RO)]
    hg[12] += ['s_mov_b64 exec, s[68:69]', 'buffer_store_dwordx4 %s, v%d, s[4:7], s%d offen' % (vr(q2, 4), vSW, sPartG2), 's_mov_b64 exec, -1']
    f = first(q0)
    hg[12] += f[:1]; hg[13] += f[1:3]; hg[14] += f[3:]
    f = second(q0, hacc[1])
    hg[15] += f
    hg[16] += ['buffer_store_dwordx4 %s, v%d, s[4:7], s%d offen' % (vr(q0, 4), vL16, sPart)]
    f = first(q1)
    hg[18] += f[:1]; hg[19] += f[1:]
    hg[19] += second(q1, hacc[3]) + ['buffer_store_dwordx4 %s, v%d, s[4:7], s%d offen offset:1024' % (vr(q1, 4), vL16, sPart)]
    for a, b in zip(lhi, lhi[3:]):
        g = place(hg, ld_stage(where[horder[b]]), max(a, cfg.get('hst', 5))); assert g < b - 2, (g, b)
    th5 = TS('h5'); thend = TS('hend')
    gh = cfg.get('ghint', 0)
    gp = cfg.get('gprobe', (8, 11, 15, 18))

    def emit_h(watch):
        for i in range(4): p('v_mov_b32_dpp v%d, v%d quad_perm:[%s] row_mask:0xf bank_mask:0xf' % (OWN + i, OA + (i & 1), '1,1,3,3' if i >> 1 else '0,0,2,2'))
        p('v_xor_b32 v%d, 512, v%d\nv_mov_b64 %s, 0' % (vR1, vOA, vr(HACC + 12, 2)))
        for i, f in enumerate(horder):
            p(smf(hacc[f[1]], OWN if f[2] == 0 else OA + 4 * f[2], where[f]))
            if i == 5:
                for l in th5: p(l)
            if watch and i == gh:
                p('s_mov_b64 exec, 1\nbuffer_store_dword v%d, v%d, s[4:7], s%d offen\ns_mov_b64 exec, -1' % (VACC + 1, vL16, sHintW))
            if watch and i in gp: p(hintl)
            for l in hg[i]: p(l)
            if watch and i == 6: p('v_bfe_u32 v%d, v%d, 2, 7' % (HA, vL16))
        for l in thend: p(l)
        if stamp: p('s_memtime s[92:93]')
        p('s_mov_b32 s%d, s%d' % (sStep, sStep1))
    if stamp: nst[0] += 1
    SEL, RD, TT, LA = AV, AV + 4, VACC, ACC

    def setup_red():
        p('''
        v_and_b32 v{t0}, 16, v{l16}
        v_lshlrev_b32_e64 v{t0}, v{t0}, s{one}
        v_bfe_u32 v{t1}, v{l16}, 5, 3
        v_cmp_eq_u32 vcc, 0, v{t1}
        v_cmp_eq_u32 s[38:39], 1, v{t1}
        v_cmp_eq_u32 s[40:41], 2, v{t1}
        v_cndmask_b32 v{s0}, 0, v{t0}, vcc
        v_cmp_eq_u32 vcc, 3, v{t1}
        v_cndmask_b32 v{s1}, 0, v{t0}, s[38:39]
        v_cndmask_b32 v{s2}, 0, v{t0}, s[40:41]
        v_cndmask_b32 v{s3}, 0, v{t0}, vcc
        v_mov_b64 v[{n0}:{n1}], -1
        '''.format(t0=TT, t1=TT + 1, l16=vL16, one=sOne, s0=SEL, s1=SEL + 1, s2=SEL + 2, s3=SEL + 3, n0=TT + 2, n1=TT + 3))

    def roundA():
        if stamp: p('s_add_u32 s25, s25, 1')
        for q in range(4): p('buffer_load_dwordx4 %s, v%d, s[4:7], s%d offen sc1' % (vr(LA + 4 * q, 4), vRA, sLine + q))
    emit_h(False)
    setup_red()
    p('s_barrier')
    T('bar4')
    dA = (cfg.get('dA0', 56), cfg.get('dA2', 24) + cfg.get('dA1', 10), cfg.get('dA2', 24))
    tA = TS('pollA')
    p('s_cmp_eq_u32 s12, 0\ns_cbranch_scc1 L_c_pa0')
    p('s_cmp_eq_u32 s%d, 0\ns_cbranch_scc1 L_c_idle' % sRed)
    if dA[1] != dA[2]:
        p('s_cmp_eq_u32 s12, 2\ns_cbranch_scc1 L_c_pa2'); p(nops(dA[1] - dA[2])); p('L_c_pa2:')
    p(nops(dA[2]))
    for l in tA: p(l)
    roundA(); prefill()
    p('s_branch L_c_pa')
    p('L_c_pa0:')
    p(nops(dA[0]))
    for l in tA: p(l)
    roundA(); prefill()
    p('s_branch L_c_pa')
    p('L_c_pollA:')
    roundA()
    p('L_c_pa:')
    p('''
    s_mov_b64 exec, s[70:71]
    buffer_store_dwordx2 v[{n0}:{n1}], v{rb}, s[4:7], s{arm} offen
    s_mov_b64 exec, -1
    s_sub_u32 s{bud}, s{bud}, 1
    s_cbranch_scc1 L_end
    v_mfma_f32_16x16x32_bf16 {rd}, {sel}, {l0}, 0
    v_mfma_f32_16x16x32_bf16 {rd}, {sel}, {l1}, {rd}
    v_bitop3_b32 v{t0}, v{x0}, v{x1}, s{tag} bitop3:0x7e
    v_mfma_f32_16x16x32_bf16 {rd}, {sel}, {l2}, {rd}
    v_mfma_f32_16x16x32_bf16 {rd}, {sel}, {l3}, {rd}
    v_bitop3_b32 v{t1}, v{x2}, v{x3}, s{tag} bitop3:0x7e
    v_bitop3_b32 v{t0}, v{t0}, v{t1}, s{mask} bitop3:0xa8
    v_cmp_ne_u32 vcc, 0, v{t0}
    '''.format(rd=vr(RD, 4), sel=vr(SEL, 4), l0=vr(LA, 4), l1=vr(LA + 4, 4), l2=vr(LA + 8, 4), l3=vr(LA + 12, 4), bud=sBudget,
               t0=TT, t1=TT + 1, x0=LA, x1=LA + 4, x2=LA + 8, x3=LA + 12, tag=sTag, mask=sMask, n0=TT + 2, n1=TT + 3, rb=vRB, arm=sArm))
    T('Aret')
    for i in range(4): p('v_add_f32_dpp v%d, v%d, v%d %s' % (RD + i, RD + i, RD + i, RO))
    p('''
    v_cvt_pk_bf16_f32 v{r0}, v{r0}, v{r1}
    v_cvt_pk_bf16_f32 v{r1}, v{r2}, v{r3}
    v_min_u32 v{r0}, -2, v{r0}
    s_cbranch_vccnz L_c_pollA
    s_mov_b64 exec, s[70:71]
    buffer_store_dwordx2 v[{r0}:{r1}], v{rb}, s[4:7], s{res} offen
    s_mov_b64 exec, -1
    L_c_nored:
    '''.format(r0=RD, r1=RD + 1, r2=RD + 2, r3=RD + 3, rb=vRB, res=sRes))
    ST('red')
    p('s_barrier')
    if stamp:
        n = nst[0]
        p('s_memtime s[%d:%d]\ns_waitcnt lgkmcnt(0)' % (82 + 2 * n, 83 + 2 * n))
        for i in range(n): p('s_sub_u32 s40, s%d, s%d\ns_add_u32 s%d, s%d, s40' % (84 + 2 * i, 82 + 2 * i, 16 + i, 16 + i))
    if trace:
        p('s_cmp_lg_u32 s%d, %d\ns_cbranch_scc1 L_c_loop\ns_waitcnt lgkmcnt(0)' % (sStep, trace))
        for i, r in enumerate(TP[:len(tnames)]): p('v_writelane_b32 v%d, s%d, %d' % (vJunk, r, i))
        p('s_lshl_b32 s40, s14, 5\ns_add_u32 s40, s40, s13\ns_lshl_b32 s40, s40, 2\ns_add_u32 s40, s40, s12\ns_lshl_b32 s40, s40, 7\ns_add_u32 s40, s40, %d' % WS_STAMP)
        p('v_lshrrev_b32 v%d, 2, v%d\ns_mov_b64 exec, 0xfffff\nbuffer_store_dword v%d, v%d, s[4:7], s40 offen\ns_mov_b64 exec, -1' % (vR1, vL16, vJunk, vR1))
    p('s_branch L_c_loop')
    p('L_c_watch:')
    emit_h(True)
    p(hintl)
    for k, g in enumerate(gp):
        n = len(gp) - k + (1 if g <= 12 else 0) + (1 if g <= 16 else 0) + 1 + k
        p('s_waitcnt vmcnt(%d)' % n)
        p(RAW('v_cmp_ne_u32 vcc, s%d, v%d' % (sStep, HV)))
        p('s_cbranch_vccz L_c_hintok')
        if stamp: p('s_add_u32 s25, s25, 1')
        p(hintl)
    p('L_c_hint:')
    p('s_sub_u32 s{bud}, s{bud}, 1\ns_cbranch_scc1 L_end\ns_waitcnt vmcnt({n})'.format(bud=sBudget, n=len(gp)))
    p(RAW('v_cmp_ne_u32 vcc, s%d, v%d' % (sStep, HV)))
    p('s_cbranch_vccz L_c_hintok')
    if stamp: p('s_add_u32 s25, s25, 1')
    p(hintl)
    p('s_branch L_c_hint')
    p('L_c_hintok:')
    p('s_barrier')
    if cfg.get('ev') == 1: EV(p, cfg, 15, ACC, dyn='s%d' % sStep)
    p('L_c_idle:')
    prefill()
    p('s_branch L_c_nored')
    p('L_c_twretry:')
    if stamp: p('s_add_u32 s26, s26, 1')
    p(twl)
    p('''
    s_sub_u32 s{bud}, s{bud}, 1
    s_cbranch_scc1 L_end
    s_waitcnt vmcnt(0)
    v_cmp_eq_u32 vcc, -1, v{w2}
    s_cbranch_vccnz L_c_twretry
    v_mfma_f32_16x16x32_bf16 v[{o4}:{o7}], v[{V4}:{V7}], v[{p0}:{p3}], 0
    v_mfma_f32_16x16x16_bf16 v[{o4}:{o7}], v[{w2}:{w3}], v[{pm}:{pm1}], v[{o4}:{o7}]
    s_nop 3
    s_branch L_c_twok
    '''.format(bud=sBudget, **fm))
    for name, ld, reg, back in (('late', late, AA + 4, 'L_c_lateok'), ('g2', g2l, HP, 'L_c_g2ok')):
        p('L_c_%sretry:' % name)
        if stamp: p('s_add_u32 s27, s27, %d' % (1 if name == 'late' else 1000))
        p(ld)
        p('s_sub_u32 s{bud}, s{bud}, 1\ns_cbranch_scc1 L_end\ns_waitcnt vmcnt(0)'.format(bud=sBudget))
        for l in chk(reg): p(l)
        p('s_cbranch_vccnz L_c_%sretry\ns_branch %s' % (name, back))
    if flags:
        p('L_c_kvspin:'); flag_for(1); flag_spin('L_c_kvspin2'); flag_for(2); p(flagl); p('s_branch L_c_kvok')
    p('L_c_Bretry:')
    p(early); p(late)
    p('s_sub_u32 s{bud}, s{bud}, 1\ns_cbranch_scc1 L_end\ns_branch L_c_pollB'.format(bud=sBudget))
    p('L_c_last:')
    p(kms)
    p('s_waitcnt vmcnt(0) lgkmcnt(0)')
    if stamp:
        p('s_nop 7')
        for i in range(12): p('v_mov_b32 v%d, s%d' % (16 + i, 16 + i))
        p('v_mov_b32 v23, s15')
        p('s_lshl_b32 s40, s14, 5\ns_add_u32 s40, s40, s13\ns_lshl_b32 s40, s40, 2\ns_add_u32 s40, s40, s12\ns_lshl_b32 s40, s40, 6\ns_add_u32 s40, s40, %d' % WS_STAMP)
        p('s_mov_b64 exec, 1')
        for i in range(3): p('buffer_store_dwordx4 v[%d:%d], v0, s[4:7], s40 offen offset:%d' % (16 + 4 * i, 19 + 4 * i, 16 * i))
        p('s_mov_b64 exec, -1')
    p('s_branch L_end')
```

```python
import struct
def f2hex(x): return '0x%08x' % struct.unpack('<I', struct.pack('<f', x))[0]
HOPA_STRIDE = 10240 + 128
WS_FQKV    = 0x0000000
WS_FH      = 0x0001000
WS_FU      = 0x0002000
WS_HINT    = 0x000e000
WS_HOPA    = 0x0010000
WS_HOPB    = 0x0070000
WS_HOPX    = 0x0080000
WS_MOD     = 0x0100000
CTRL_END   = 0x0102000
WS_PROBE   = 0x0190000
WS_STAMP   = 0x01a0000
WS_H       = 0x0400000
WS_KM      = 0x0800000
WS_VM      = 0x0c00000
WS_Q       = 0x1000000
WS_KV      = 0x2000000
WS_POST    = 0x4100000
WS_SIZE    = 0x10000000


def EV(p, cfg, idx, va=2, sa=94, dyn=None, clk=False):
    if not cfg.get('ev'): return
    p('''
    {op} s[{sa}:{sb}]
    s_waitcnt lgkmcnt(0)
    v_mov_b32 v{va}, s{sa}
    s_lshl_b32 s{sa}, s14, 5
    s_add_u32 s{sa}, s{sa}, s13
    s_lshl_b32 s{sa}, s{sa}, 7
    s_add_u32 s{sa}, s{sa}, {dyn}
    s_lshl_b32 s{sa}, s{sa}, 2
    s_add_u32 s{sa}, s{sa}, {base}
    v_mov_b32 v{vb}, 0
    s_mov_b64 exec, 1
    buffer_store_dword v{va}, v{vb}, s[4:7], s{sa} offen
    s_mov_b64 exec, -1
    '''.format(sa=sa, sb=sa + 1, va=va, vb=va + 1, base=WS_STAMP + 4 * idx, dyn=dyn or 0, op='s_memtime' if clk else 's_memrealtime'))
```

```python
from layout import *
from worker import *

ROWS = 32 * 1280 + 256
PART_B, H2 = 0x180000, 0x300000
L_H2, L_WD, L_O, L_ACT, L_RED = 0, 40960, 122880, 131072, 135168
sSeg, sIt, sPA, sPB, sH2, sFl, sQ, sKV, sKM, sVM, sScale, sRowA, sRowB, sXo, sV = 61, 62, 63, 64, 65, 66, 67, 68, 69, 70, 71, 72, 73, 74, 75
mMask = 76
vKM, vOW, vSt4, vSt1, vRA, vRB, vRW, vL4, vH2, vAW, vWD = 4, 5, 6, 7, 8, 9, 10, 11, 12, 13, 14
SEL = 16
DS = 24
MODV = 24
X1 = 44
XR = 54
L_MOD = 145408
IN = 60
WK = 124


def gen_post(p, cfg):
    st = ' sc1' if cfg.get('slow') else ''
    L = lambda s: s + cfg.get('sfx', '')
    pn = cfg.setdefault('pnames', [])

    def PT(name):
        if not cfg.get('ptrace'): return
        p('s_memtime s[94:95]\ns_waitcnt lgkmcnt(0)\nv_writelane_b32 v15, s94, %d' % len(pn)); pn.append(name)
    p('''
    v_and_b32 v16, 15, v{l}             ; c
    v_lshrrev_b32 v17, 4, v{l}          ; g
    s_mul_i32 s{t}, s12, 320
    ; Wo rows 8g: v2 (x4 part), v3 (x1 part)
    v_mul_u32_u24 v18, 10240, v17
    s_mul_i32 s{t2}, s13, 163840
    s_add_u32 s{t2}, s{t2}, s{t}
    v_add_u32 v18, s{t2}, v18
    v_lshl_add_u32 v2, v16, 4, v18
    v_lshl_add_u32 v3, v16, 2, v18
    ; W_down rows 64 rank + 16 g: v4, v5
    v_mul_u32_u24 v18, 20480, v17
    s_mul_i32 s{t2}, s13, 81920
    s_add_u32 s{t2}, s{t2}, s{t}
    v_add_u32 v18, s{t2}, v18
    v_lshl_add_u32 v4, v16, 4, v18
    v_lshl_add_u32 v5, v16, 2, v18
    ; gate / up rows 8g, column 64 rank + 4c + (w&2): v6
    v_mul_u32_u24 v18, 27648, v17
    s_lshl_b32 s{t2}, s13, 7
    v_add_u32 v18, s{t2}, v18
    v_lshl_add_u32 v6, v16, 3, v18
    s_mul_i32 s{t}, s12, 20480
    s_add_u32 s{t}, s{t}, {lwd}
    v_add_u32 v{wd}, s{t}, v{l16}
    '''.format(l=vL, t=sT, t2=sT2, s0=sSel0, s1=sSel1, lwd=L_WD, wd=vWD, l16=vL16))
    RB = 32

    def rows(u):
        if u[0] == 'o': return [32 * u[1] + j for j in range(8)]
        return [2 * u[1] + (i4 >> 1) + 8 * (i4 & 1) + 4 * z for i4 in range(4) for z in (0, 1)]

    def issue_od(u, slot):
        b = RB + 40 * slot
        sr, va = (sWo, 2) if u[0] == 'o' else (sWd, 4)
        for j, r in enumerate(rows(u)):
            p('s_mov_b32 s%d, %d' % (sT, r * 1280))
            p('buffer_load_dwordx4 %s, v%d, %s, s%d offen' % (vr(b + 4 * j, 4), va, srd(sr), sT))
            p('buffer_load_dword v%d, v%d, %s, s%d offen offset:256' % (b + 32 + j, va + 1, srd(sr), sT))

    def finish_od(u, slot):
        b = RB + 40 * slot
        for t in range(10):
            for i4 in range(4):
                lo = b + 8 * i4 + (t >> 1) if t < 8 else b + 32 + 2 * i4
                hi = lo + 4 if t < 8 else lo + 1
                if u[0] == 'o': put(p, 16 * t + 4 * u[1] + i4, hi, lo, sSel0 + (t & 1), 16 + i4)
                else: p('v_perm_b32 v%d, v%d, v%d, s%d' % (16 + 4 * (t & 1) + i4, hi, lo, sSel0 + (t & 1)))
            if u[0] == 'd':
                p('ds_write_b128 v%d, %s offset:%d' % (vWD, vr(16 + 4 * (t & 1), 4), (2 * t + u[1]) * 1024))
                if t & 1: p('s_waitcnt lgkmcnt(0)')
    pipeline([('o', k) for k in range(4)], 3, issue_od, finish_od)
    p('s_cmp_ge_u32 s13, 27\ns_cbranch_scc1 ' + L('L_p_now'))
    pipeline([('d', k) for k in range(2)], 3, issue_od, finish_od)

    p('''
    s_mul_i32 s{t}, s12, {rows}
    v_add_u32 v6, s{t}, v6
    s_lshl_b32 s{t}, s12, 11
    v_add_u32 v7, s{t}, v{l16}          ; write: tile*8192 + wave*2048 + m*1024
    s_lshl_b32 s{t}, s12, 13
    v_add_u32 v8, s{t}, v{l16}          ; read
    '''.format(t=sT, rows=32 * 3456, l16=vL16))

    def issue_g(r, slot):
        b = RB + 32 * slot
        for i4 in range(4):
            p('s_mov_b32 s%d, %d' % (sT, (128 * r + 2 * i4) * 3456))
            for m, sr in enumerate((sWg, sWu)):
                p('buffer_load_dwordx2 %s, v6, %s, s%d offen' % (vr(b + 16 * m + 4 * i4, 2), srd(sr), sT))
                p('buffer_load_dwordx2 %s, v6, %s, s%d offen offset:3456' % (vr(b + 16 * m + 4 * i4 + 2, 2), srd(sr), sT))

    def finish_g(r, slot):
        b = RB + 32 * slot
        for m in (0, 1):
            for t in range(4):
                for i4 in range(4):
                    lo = b + 16 * m + 4 * i4 + (t >> 1)
                    p('v_perm_b32 v%d, v%d, v%d, s%d' % (16 + 4 * t + i4, lo + 2, lo, sSel0 + (t & 1)))
            if m == 0: p('s_barrier')
            for t in range(4): p('ds_write_b128 v7, %s offset:%d' % (vr(16 + 4 * t, 4), t * 8192 + m * 1024))
            p('s_waitcnt lgkmcnt(0)')
        p('s_barrier')
        for w in range(4):
            for m in (0, 1): p('ds_read_b128 %s, v8 offset:%d' % (wreg(160 + 8 * (4 * r + w) + 4 * m), w * 2048 + m * 1024))
        p('s_waitcnt lgkmcnt(0)')
    pipeline(list(range(5)), 4, issue_g, finish_g)
    p(L('L_p_now') + ':')
    EV(p, cfg, 10)
    p('''
    s_waitcnt vmcnt(0) lgkmcnt(0)
    v_and_b32 v60, 15, v{l}             ; c
    v_lshrrev_b32 v61, 4, v{l}          ; g
    v_lshlrev_b32 v{l4}, 2, v{l}
    ; k_mem gather: 128 g + 32 (c>>2) + 16 (c&1)
    v_lshrrev_b32 v62, 1, v{l16}
    v_and_b32 v62, 0x1e0, v62
    v_and_or_b32 v{km}, v{l16}, 16, v62
    ; o write: L_O + qt*4096 + (2 eh + (g>>1))*1024 + (g&1)*512 + 16 c
    s_and_b32 s{t}, s12, 1
    s_lshl_b32 s{t}, s{t}, 12
    s_lshr_b32 s{t2}, s12, 1
    s_lshl_b32 s{t2}, s{t2}, 11
    s_add_u32 s{t}, s{t}, s{t2}
    s_add_u32 s{t}, s{t}, {lo}
    v_lshlrev_b32 v62, 9, v61
    v_lshl_add_u32 v62, v60, 4, v62
    v_add_u32 v{ow}, s{t}, v62
    ; partial stores: row 4g, this head, columns of this wave
    s_mul_i32 s{t}, s13, 1280
    s_mul_i32 s{t2}, s12, 320
    s_add_u32 s{t}, s{t}, s{t2}
    v_mul_u32_u24 v62, {rows4}, v61
    v_add_u32 v62, s{t}, v62
    v_lshl_add_u32 v{st4}, v60, 4, v62
    v_lshl_add_u32 v{st1}, v60, 2, v62
    ; reduce loads: partial 8w + g (+4), granule c
    s_lshl_b32 s{t}, s12, 3
    v_add_u32 v62, s{t}, v61
    v_mul_u32_u24 v63, 1280, v62
    v_lshl_add_u32 v{ra}, v60, 4, v63
    v_mov_b32 v64, 0x7f000000
    v_cmp_gt_u32 vcc, 27, v62
    v_cndmask_b32 v{rb}, v64, v{ra}, vcc
    ; reduce scratch write: L_RED + 2560 w + (g>>1)*512 + 32 c + 16 (g&1)
    s_mul_i32 s{t}, s12, 2560
    s_add_u32 s{t}, s{t}, {lred}
    v_lshrrev_b32 v62, 1, v61
    v_lshlrev_b32 v62, 9, v62
    v_lshl_add_u32 v62, v60, 5, v62
    v_and_b32 v63, 1, v61
    v_lshl_add_u32 v62, v63, 4, v62
    v_add_u32 v{rw}, s{t}, v62
    ; h2 store: column 128k + 2l -> chunk 16k + (l>>2): (l>>4)*2048 + ((l>>2)&3)*256 + 4 (l&3) + row part
    v_lshlrev_b32 v62, 11, v61
    v_bfe_u32 v63, v{l}, 2, 2
    v_lshl_add_u32 v62, v63, 8, v62
    v_and_b32 v63, 3, v{l}
    v_lshl_add_u32 v62, v63, 2, v62
    s_lshr_b32 s{t}, s13, 4
    s_lshl_b32 s{t}, s{t}, 10
    s_and_b32 s{t2}, s13, 15
    s_lshl_b32 s{t2}, s{t2}, 4
    s_add_u32 s{t}, s{t}, s{t2}
    v_add_u32 v{h2}, s{t}, v62
    ; act write: L_ACT + (w>>1)*1024 + 16 lane + 8 (w&1)
    s_lshr_b32 s{t}, s12, 1
    s_lshl_b32 s{t}, s{t}, 10
    s_and_b32 s{t2}, s12, 1
    s_lshl_b32 s{t2}, s{t2}, 3
    s_add_u32 s{t}, s{t}, s{t2}
    s_add_u32 s{t}, s{t}, {lact}
    v_add_u32 v{aw}, s{t}, v{l16}
    ; selection matrices
    v_and_b32 v62, 16, v{l16}
    s_movk_i32 s{t}, 0x3f80
    v_lshlrev_b32_e64 v62, v62, s{t}
    v_lshrrev_b32 v63, 1, v60
    '''.format(l=vL, l16=vL16, l4=vL4, km=vKM, t=sT, t2=sT2, lo=L_O, ow=vOW, rows4=4 * ROWS, st4=vSt4, st1=vSt1, ra=vRA, rb=vRB,
               lred=L_RED, rw=vRW, h2=vH2, lact=L_ACT, aw=vAW))
    for i in range(8): p('v_cmp_eq_u32 vcc, %d, v63\nv_cndmask_b32 v%d, 0, v62, vcc' % (i, SEL + i))
    p('s_and_b32 s{t}, s12, 1\ns_lshl_b32 s{t}, s{t}, 4\nv_add_u32 v62, s{t}, v60\nv_lshlrev_b32 v63, 2, v61\nv_sub_u32 v62, v62, v63'.format(t=sT))
    for T in (0, 1):
        for i in range(4): p('v_cmp_le_i32 s[%d:%d], %d, v62' % (mMask + 8 * T + 2 * i, mMask + 8 * T + 2 * i + 1, 16 * T + i))
    p('''
    s_lshl_b32 s{t}, s{y}, 22
    s_add_u32 s{pa}, s{t}, {post}
    s_add_u32 s{pb}, s{pa}, {pbo}
    s_add_u32 s{h2}, s{pa}, {h2o}
    s_mul_i32 s{t}, s13, {rows}
    s_add_u32 s{rowa}, s{pa}, s{t}
    s_add_u32 s{rowb}, s{pb}, s{t}
    s_lshl_b32 s{t}, s{y}, 9
    s_add_u32 s{fl}, s{t}, {fu}
    s_mov_b32 s{seg}, s{y}
    s_mov_b32 s{it}, 1
    s_mov_b32 s{sc}, {scv}
    '''.format(t=sT, y=sY, pa=sPA, post=WS_POST, pb=sPB, pbo=PART_B, h2=sH2, h2o=H2, rows=ROWS, rowa=sRowA, rowb=sRowB, fl=sFl, fu=WS_FU,
               seg=sSeg, it=sIt, sc=sScale, scv=f2hex(1.4426950408889634 * 128 ** -0.5)))
    p('''
    s_lshr_b32 s{t}, s13, 1
    s_lshl_b32 s{t}, s{t}, 8
    s_add_u32 s{t}, s{t}, {fq}
    s_mov_b32 s{t2}, {mod}
    {l}:
    s_mov_b64 exec, 0x7777
    buffer_load_dword v60, v{l16}, s[4:7], s{t} offen sc1
    s_mov_b64 exec, -1
    '''.format(t=sT, t2=sT2, fq=WS_FQKV, mod=WS_MOD + 2560, l=L('L_p_w0'), l16=vL16))
    for j in range(20):
        if j == 15: p('s_add_u32 s%d, s%d, 3840' % (sT3, sT2))
        p('buffer_load_dword v%d, v%d, s[4:7], s%d offen offset:%d sc1' % (MODV + j, vL4, sT2 if j < 15 else sT3, 256 * (j % 15)))
    p('s_sub_u32 s{b}, s{b}, 1\ns_cbranch_scc1 L_end\ns_waitcnt vmcnt(0)'.format(b=sBud))
    p('v_max_u32 v61, v%d, v%d' % (MODV, MODV + 1))
    for j in range(1, 10): p('v_max3_u32 v61, v61, v%d, v%d' % (MODV + 2 * j, MODV + 2 * j + 1))
    p('''
    v_cmp_eq_u32 vcc, -1, v61
    s_cbranch_vccnz {l}
    v_cmp_ne_u32 vcc, 16, v60
    s_and_b32 s{t3}, vcc_lo, 0x7777
    s_cbranch_scc1 {l}
    '''.format(l=L('L_p_w0'), t3=sT3))
    p('v_add_u32 v60, %d, v%d' % (L_MOD, vL16))
    for j in range(5): p('ds_write_b128 v60, %s offset:%d' % (vr(MODV + 4 * j, 4), 1024 * j))
    p('s_waitcnt lgkmcnt(0)')
    wait_count(p, DBG_RDY2, 192, sBud, 60)
    read_par(p, 93, 60)

    def seg_addrs():
        p('''
        s_lshl_b32 s{t}, s{seg}, 5
        s_add_u32 s{t}, s{t}, s13
        s_mul_i32 s{xo}, s{t}, 1280
        s_lshl_b32 s{q}, s{t}, 13
        s_and_b32 s{t2}, s12, 1
        s_lshl_b32 s{t2}, s{t2}, 10
        s_add_u32 s{q}, s{q}, s{t2}
        s_add_u32 s{q}, s{q}, {Q}
        s_lshl_b32 s{kv}, s{t}, 14
        s_add_u32 s{kv}, s{kv}, {KV}
        s_lshr_b32 s{km}, s{t}, 2
        s_lshl_b32 s{km}, s{km}, 14
        s_and_b32 s{t2}, s13, 3
        s_lshl_b32 s{t2}, s{t2}, 11
        s_add_u32 s{km}, s{km}, s{t2}
        s_lshr_b32 s{t2}, s{seg}, 4
        s_lshr_b32 s{t2}, s93, s{t2}
        s_and_b32 s{t2}, s{t2}, 0x2000
        s_add_u32 s{km}, s{km}, s{t2}
        s_add_u32 s{vm}, s{km}, {KM}
        s_xor_b32 s{km}, s{vm}, 0x2000
        s_lshr_b32 s{t2}, s12, 1
        s_lshl_b32 s{t2}, s{t2}, 8
        s_add_u32 s{vm}, s{vm}, s{t2}
        s_lshl_b32 s{t2}, s{t2}, 2
        s_add_u32 s{v}, s{kv}, s{t2}
        '''.format(t=sT, t2=sT2, seg=sSeg, xo=sXo, q=sQ, Q=WS_Q, kv=sKV, KV=WS_KV, km=sKM, KM=WS_KM, vm=sVM, VM=WS_VM, v=sV))
    Q, K, V = IN, IN + 16, IN + 48

    def fetch_list():
        r = []
        for w in range(4):
            pre = 's_add_u32 s%d, s%d, 4096\n' % (sQ, sQ) if w == 2 else ''
            r.append(pre + 'buffer_load_dwordx4 %s, v%d, s[4:7], s%d offen offset:%d sc1' % (vr(Q + 4 * w, 4), vL16, sQ, (w & 1) * 2048))
        for w in range(4):
            pre = 's_add_u32 s{kv}, s{kv}, 4096\ns_add_u32 s{v}, s{v}, 4096\n'.format(v=sV, kv=sKV) if w else ''
            for T in (0, 1):
                r.append(pre + 'buffer_load_dwordx4 %s, v%d, s[4:7], s%d offen offset:%d sc1' % (vr(K + 8 * w + 4 * T, 4), vL16, sKV, T * 1024)); pre = ''
            r.append('buffer_load_dwordx4 %s, v%d, s[4:7], s%d offen offset:2048 sc1' % (vr(V + 4 * w, 4), vL16, sV))
        return r

    def fetch_inputs():
        for l in fetch_list(): p(l)
    KMr, VMr, S = WK + 44, WK + 60, WK

    def fetch_km():
        for w in range(4):
            p('buffer_load_dwordx4 %s, v%d, s[4:7], s%d offen offset:%d sc1' % (vr(KMr + 4 * w, 4), vKM, sKM, 512 * w))
            p('buffer_load_dword v%d, v%d, s[4:7], s%d offen offset:%d sc1' % (VMr + 2 * w, vL4, sVM, 512 * w))

    def signal(ph):
        l = p.newlabel(L('L_ps'))
        p('''
        s_waitcnt vmcnt(0)
        s_barrier
        s_cmp_lg_u32 s12, 0
        s_cbranch_scc1 {l}
        s_lshl_b32 s{t}, s13, 2
        s_add_u32 s{t}, s{t}, s{fl}
        v_mov_b32 v2, s{it}
        s_mov_b64 exec, 1
        buffer_store_dword v2, v{ln}, s[4:7], s{t} offen offset:{o}{st}
        s_mov_b64 exec, -1
        {l}:
        '''.format(l=l, t=sT, fl=sFl, it=sIt, ln=vL, o=128 * ph, st=st))

    def await_(ph, n):
        l = p.newlabel(L('L_pw'))
        p('''
        s_cmp_lg_u32 s12, 0
        s_cbranch_scc1 {l}x
        s_mov_b32 exec_lo, {m}
        s_mov_b32 exec_hi, 0
        {l}:
        buffer_load_dword v2, v{l4}, s[4:7], s{fl} offen offset:{o} sc1
        s_sub_u32 s{b}, s{b}, 1
        s_cbranch_scc1 L_end
        s_waitcnt vmcnt(0)
        v_cmp_gt_u32 vcc, s{it}, v2
        s_cbranch_vccnz {l}
        s_mov_b64 exec, -1
        {l}x:
        s_barrier
        '''.format(l=l, m=hex((1 << n) - 1), l4=vL4, fl=sFl, o=128 * ph, b=sBud, it=sIt))

    def gemm_out(nks, afrag, bfrag, base, O, pre=None):
        AC = WK
        pend = []
        for T in (0, 1):
            n = 0
            for t in range(10):
                for ks in range(nks):
                    a = vr(AC + 4 * t, 4)
                    p('v_mfma_f32_16x16x32_bf16 %s, %s, %s, %s' % (a, afrag(T, ks), bfrag(T, t, ks), a if ks else '0'))
                    if pre:
                        for l in pre(T, t, ks): p(l)
                    if pend and ks == nks - 1: p(pend.pop(0))
            for l in pend: p(l)
            pend = []
            for i in range(4):
                for d in range(5): p('v_cvt_pk_bf16_f32 v%d, v%d, v%d' % (O + 4 * i + d if d < 4 else O + 16 + i, AC + 8 * d + i, AC + 8 * d + 4 + i))
                l1 = 's_add_u32 s%d, s%d, %d\nbuffer_store_dwordx4 %s, v%d, s[4:7], s%d offen%s' % (sT, base, (16 * T + i) * ROWS, vr(O + 4 * i, 4), vSt4, sT, st)
                l2 = 'buffer_store_dword v%d, v%d, s[4:7], s%d offen offset:256%s' % (O + 16 + i, vSt1, sT, st)
                if T: p(l1); p(l2)
                else: pend += [l1, l2]

    def reduce(row, second):
        LD, D = WK, WK + 40
        p('s_add_u32 s%d, s%d, 5120' % (sT, row))
        for a in (0, 1):
            va = vRB if second else vRA
            if second and a == 1:
                p('s_cmp_eq_u32 s12, 3\ns_cselect_b32 s%d, 0x7f000000, 0\nv_or_b32 v3, s%d, v%d' % (sT2, sT2, vRB)); va = 3
            for ch in range(5):
                p('buffer_load_dwordx4 %s, v%d, s[4:7], s%d offen offset:%d sc1' % (vr(LD + 20 * a + 4 * ch, 4), va, sT if a else row, 256 * ch))
        for a in (0, 1):
            for ch in range(5):
                d = vr(D + 4 * (ch >> 1), 4)
                p('v_mfma_f32_16x16x32_bf16 %s, %s, %s, %s' % (d, vr(SEL + 4 * (ch & 1), 4), vr(LD + 20 * a + 4 * ch, 4), d if (a or ch & 1) else '0'))
        p('ds_write_b128 v%d, %s\nds_write_b128 v%d, %s offset:1024' % (vRW, vr(D, 4), vRW, vr(D + 4, 4)))
        p('s_mov_b32 exec_hi, 0\nds_write_b128 v%d, %s offset:2048\ns_mov_b64 exec, -1' % (vRW, vr(D + 8, 4)))
        p('v_lshlrev_b32 v2, 1, v%d\nv_add_u32 v2, %d, v2\ns_waitcnt lgkmcnt(0)\ns_barrier' % (vL4, L_RED))

    def gather(js):
        R = WK
        p('v_add_u32 v3, %d, v%d' % (L_MOD, vL16))
        for j in js: p('ds_read_b128 %s, v3 offset:%d' % (vr(MODV + 4 * j, 4), 1024 * j))
        for w in range(4):
            for k in range(5): p('ds_read_b64 %s, v2 offset:%d' % (vr(R + 10 * w + 2 * k, 2), 2560 * w + 512 * k))
        for k in range(5):
            r = R + 2 * k
            p('v_pk_add_f32 %s, %s, %s' % (vr(r, 2), vr(r, 2), vr(r + 10, 2)))
            p('v_pk_add_f32 %s, %s, %s' % (vr(r + 20, 2), vr(r + 20, 2), vr(r + 30, 2)))
            p('v_pk_add_f32 %s, %s, %s' % (vr(r, 2), vr(r, 2), vr(r + 20, 2)))

    def wavesum(r, t):
        for q in ('quad_perm:[1,0,3,2]', 'quad_perm:[2,3,0,1]', 'row_ror:4', 'row_ror:8'):
            p('v_add_f32_dpp v%d, v%d, v%d %s row_mask:0xf bank_mask:0xf' % (r, r, r, q))
        xsum(p, r, t)

    def rnd(r):
        p('v_cvt_pk_bf16_f32 v%d, v%d, v%d' % (r + 1, r, r + 1)); unpack2(r + 1, r)

    def unpack2(src, d): p('v_lshlrev_b32 v%d, 16, v%d\nv_and_b32 v%d, 0xffff0000, v%d' % (d, src, d + 1, src))

    EV(p, cfg, 11)
    seg_addrs()
    fetch_inputs()
    fetch_km()
    p('s_waitcnt vmcnt(8)')
    p(L('L_p_loop') + ':')
    PT('top')
    for T in (0, 1):
        for w in range(4):
            d = vr(S + 4 * T, 4)
            p('v_mfma_f32_16x16x32_bf16 %s, %s, %s, %s' % (d, vr(K + 8 * w + 4 * T, 4), vr(Q + 4 * w, 4), d if w else '0'))
    for w in range(4): p('v_mov_b32 v%d, 0' % (VMr + 2 * w + 1))
    p('v_mov_b32 v3, 0xff800000')
    p('s_branch ' + L('L_p_km1'))
    p(L('L_p_km') + ':')
    fetch_km()
    p(L('L_p_km1') + ':')
    p('''
    s_sub_u32 s{b}, s{b}, 1
    s_cbranch_scc1 L_end
    s_waitcnt vmcnt(0)
    v_max3_u32 v2, v{k0}, v{k1}, v{k2}
    v_max3_u32 v2, v2, v{k3}, v{v0}
    v_max3_u32 v2, v2, v{v1}, v{v2}
    v_max_u32 v2, v2, v{v3}
    v_cmp_eq_u32 vcc, -1, v2
    s_cbranch_vccz {l}x
    s_sleep 4
    s_branch {l}
    {l}x:
    '''.format(b=sBud, k0=KMr, k1=KMr + 4, k2=KMr + 8, k3=KMr + 12, v0=VMr, v1=VMr + 2, v2=VMr + 4, v3=VMr + 6, l=L('L_p_km')))
    EV(p, cfg, 31, WK + 30, dyn='s%d' % sIt)
    PT('km')
    for k in range(5): p('buffer_load_dword v%d, v%d, %s, s%d offen offset:%d' % (XR + k, vL4, srd(sX), sXo, 256 * k))
    for w in range(4):
        d = vr(S + 8, 4)
        p('v_mfma_f32_16x16x32_bf16 %s, %s, %s, %s' % (d, vr(KMr + 4 * w, 4), vr(Q + 4 * w, 4), d if w else '0'))
    for j in range(8): p('v_cndmask_b32 v%d, v3, v%d, s[%d:%d]' % (S + j, S + j, mMask + 2 * j, mMask + 2 * j + 1))
    M, TM, P = S + 12, S + 13, S + 14
    p('v_max3_f32 v%d, v%d, v%d, v%d' % (M, S, S + 1, S + 2))
    for j in (3, 5, 7): p('v_max3_f32 v%d, v%d, v%d, v%d' % (M, M, S + j, S + j + 1))
    p('v_max_f32 v%d, v%d, v%d' % (M, M, S + 9))
    xsum(p, M, TM, 'max')
    p('v_mul_f32 v%d, s%d, v%d' % (M, sScale, M))
    for j in range(10): p('v_fma_f32 v%d, v%d, s%d, -v%d' % (S + j, S + j, sScale, M))
    for j in range(10): p('v_exp_f32 v%d, v%d' % (S + j, S + j))
    for j in range(5): p('v_cvt_pk_bf16_f32 v%d, v%d, v%d' % (P + j, S + 2 * j, S + 2 * j + 1))
    p('v_mov_b32 v%d, 0' % (P + 5))
    OD = KMr
    for w in range(4): p('v_mfma_f32_16x16x32_bf16 %s, %s, %s, 0' % (vr(OD + 4 * w, 4), vr(V + 4 * w, 4), vr(P, 4)))
    for w in range(4): p('v_mfma_f32_16x16x16_bf16 %s, %s, %s, %s' % (vr(OD + 4 * w, 4), vr(VMr + 2 * w, 2), vr(P + 4, 2), vr(OD + 4 * w, 4)))
    for j in range(1, 10): p('v_add_f32 v%d, v%d, v%d' % (S, S, S + j))
    xsum(p, S, TM)
    p('v_rcp_f32 v%d, v%d' % (S, S))
    for j in range(8): p('v_pk_mul_f32 %s, %s, %s op_sel_hi:[1,0]' % (vr(OD + 2 * j, 2), vr(OD + 2 * j, 2), vr(S, 2)))
    OP = S + 4
    for i in range(4):
        for hh in (0, 1): p('v_cvt_pk_bf16_f32 v%d, v%d, v%d' % (OP + 2 * i + hh, OD + 8 * hh + i, OD + 8 * hh + 4 + i))
    p('ds_write_b128 v%d, %s\nds_write_b128 v%d, %s offset:256' % (vOW, vr(OP, 4), vOW, vr(OP + 4, 4)))
    p('v_add_u32 v2, %d, v%d\ns_waitcnt lgkmcnt(0)\ns_barrier' % (L_O, vL16))
    PT('obar')
    for j in range(8): p('ds_read_b128 %s, v2 offset:%d' % (vr(K + 4 * j, 4), 1024 * j))
    gemm_out(4, lambda T, ks: vr(K + 16 * T + 4 * ks, 4), lambda T, t, ks: wreg(16 * t + 4 * ks), sPA, WK + 40)
    PT('wo')
    signal(0)
    PT('sig0')
    await_(0, 32)
    PT('aw0')
    reduce(sRowA, False)
    PT('red0')
    p('s_cmp_lg_u32 s12, 0\ns_cbranch_scc1 ' + L('L_p_ln'))
    gather((0, 1, 2))
    R, U = WK, WK + 10
    for k in range(5):
        rnd(R + 2 * k); unpack2(MODV + k, U); unpack2(XR + k, U + 2)
        p('v_pk_fma_f32 %s, %s, %s, %s' % (vr(X1 + 2 * k, 2), vr(R + 2 * k, 2), vr(U, 2), vr(U + 2, 2)))
        rnd(X1 + 2 * k)
    p('v_pk_add_f32 %s, %s, %s' % (vr(U, 2), vr(X1, 2), vr(X1 + 2, 2)))
    for k in (2, 3, 4): p('v_pk_add_f32 %s, %s, %s' % (vr(U, 2), vr(U, 2), vr(X1 + 2 * k, 2)))
    p('v_add_f32 v%d, v%d, v%d' % (U, U, U + 1))
    wavesum(U, U + 1)
    p('v_mul_f32 v%d, %s, v%d' % (U, f2hex(-1.0 / 640), U))
    for k in range(5): p('v_pk_add_f32 %s, %s, %s op_sel_hi:[1,0]' % (vr(R + 2 * k, 2), vr(X1 + 2 * k, 2), vr(U, 2)))
    p('v_pk_mul_f32 %s, %s, %s' % (vr(U, 2), vr(R, 2), vr(R, 2)))
    for k in range(1, 5): p('v_pk_fma_f32 %s, %s, %s, %s' % (vr(U, 2), vr(R + 2 * k, 2), vr(R + 2 * k, 2), vr(U, 2)))
    p('v_add_f32 v%d, v%d, v%d' % (U, U, U + 1))
    wavesum(U, U + 1)
    p('v_mov_b32 v%d, %s\nv_fmac_f32 v%d, %s, v%d\nv_rsq_f32 v%d, v%d' % (U + 1, f2hex(1e-5), U + 1, f2hex(1.0 / 640), U, U, U + 1))
    for k in range(5):
        unpack2(MODV + 10 + k, U + 2); unpack2(MODV + 5 + k, U + 4)
        p('v_pk_add_f32 %s, %s, 1.0 op_sel_hi:[1,0]' % (vr(U + 2, 2), vr(U + 2, 2)))
        p('v_pk_mul_f32 %s, %s, %s op_sel_hi:[1,0]' % (vr(R + 2 * k, 2), vr(R + 2 * k, 2), vr(U, 2)))
        p('v_pk_fma_f32 %s, %s, %s, %s' % (vr(U + 2, 2), vr(R + 2 * k, 2), vr(U + 2, 2), vr(U + 4, 2)))
        p('v_cvt_pk_bf16_f32 v%d, v%d, v%d' % (U + 6 + k, U + 2, U + 3))
        p('s_add_u32 s%d, s%d, %d\nbuffer_store_dword v%d, v%d, s[4:7], s%d offen%s' % (sT, sH2, 8192 * k, U + 6 + k, vH2, sT, st))
    p(L('L_p_ln') + ':')
    PT('ln')
    signal(1)
    PT('sig1')
    p('s_mov_b32 s92, s%d' % sXo)
    p('s_add_u32 s%d, s%d, 6' % (sSeg, sSeg))
    seg_addrs()
    p('s_cmp_ge_u32 s13, 27\ns_cbranch_scc1 ' + L('L_p_noffn'))
    await_(1, 32)
    PT('aw1')
    p('s_lshl_b32 s%d, s12, 10' % sT3)
    for i in range(10):
        p('s_add_u32 m0, s%d, %d\ns_add_u32 s%d, s%d, m0' % (sT3, i * 4096, sT, sH2))
        p('buffer_load_dwordx4 v%d, s[4:7], s%d offen sc1 lds' % (vL16, sT))
    p('s_waitcnt vmcnt(6)\ns_barrier')
    PT('dma')
    H, G = WK, WK + 24
    rd = lambda ks, T: 'ds_read_b128 %s, v%d offset:%d' % (vr(H + 8 * (ks % 3) + 4 * T, 4), vL16, ks * 2048 + T * 1024)
    for ks in (0, 1):
        for T in (0, 1): p(rd(ks, T))
    fl = fetch_list()
    for ks in range(20):
        if ks == 6: p('s_waitcnt vmcnt(0)\ns_barrier')
        for T in (0, 1):
            for m in (0, 1):
                a = vr(G + 8 * T + 4 * m, 4)
                p('v_mfma_f32_16x16x32_bf16 %s, %s, %s, %s' % (a, wreg(160 + 8 * ks + 4 * m), vr(H + 8 * (ks % 3) + 4 * T, 4), a if ks else '0'))
                if m == 0 and ks + 2 < 20: p(rd(ks + 2, T))
                if m == 1 and ks >= 6 and (T == 1 or ks in (6, 7)) and fl: p(fl.pop(0))
    assert not fl
    PT('gu')
    for T in (0, 1):
        g = G + 8 * T
        for j in range(0, 8, 2): rnd(g + j)
        for i in range(4): p('v_max_f32 v%d, 0, v%d\nv_mul_f32 v%d, v%d, v%d' % (g + i, g + i, g + i, g + i, g + 4 + i))
        p('v_cvt_pk_bf16_f32 v%d, v%d, v%d\nv_cvt_pk_bf16_f32 v%d, v%d, v%d' % (g, g, g + 1, g + 1, g + 2, g + 3))
        p('ds_write_b64 v%d, %s offset:%d' % (vAW, vr(g, 2), 2048 * T))
    p('v_add_u32 v2, %d, v%d\ns_waitcnt lgkmcnt(0)\ns_barrier' % (L_ACT, vL16))
    PT('act')
    gen_down(p, gemm_out)
    PT('down')
    signal(2)
    PT('sig2')
    p('s_branch ' + L('L_p_fin'))
    p(L('L_p_noffn') + ':')
    fetch_inputs()
    p(L('L_p_fin') + ':')
    await_(2, 27)
    PT('aw2')
    reduce(sRowB, True)
    fetch_km()
    PT('red1')
    p('s_cmp_lg_u32 s12, 0\ns_cbranch_scc1 ' + L('L_p_nx'))
    gather((3,))
    for k in range(5):
        rnd(R + 2 * k); unpack2(MODV + 15 + k, U)
        p('v_pk_fma_f32 %s, %s, %s, %s' % (vr(U, 2), vr(R + 2 * k, 2), vr(U, 2), vr(X1 + 2 * k, 2)))
        if cfg.get('perturb') and k == 0: p('v_add_f32 v%d, %s, v%d' % (U, f2hex(cfg['perturb']), U))
        p('v_cvt_pk_bf16_f32 v%d, v%d, v%d' % (U + 2 + k, U, U + 1))
        p('buffer_store_dword v%d, v%d, %s, s92 offen offset:%d' % (U + 2 + k, vL4, srd(sOut), 256 * k))
    p(L('L_p_nx') + ':')
    PT('end')
    if cfg.get('ptrace'):
        p('s_cmp_lg_u32 s%d, %d\ns_cbranch_scc1 L_p_ntr\ns_lshl_b32 s94, s%d, 2\ns_add_u32 s94, s94, s12\ns_lshl_b32 s94, s94, 8\ns_add_u32 s94, s94, %d\nbuffer_store_dword v15, v%d, s[4:7], s94 offen\nL_p_ntr:' % (sIt, cfg['ptrace'], sWi, WS_STAMP + 0x20000, vL4))
    EV(p, cfg, 15, dyn='s%d' % sIt)
    p('s_add_u32 s%d, s%d, 1\ns_cmp_lt_u32 s%d, 64\ns_cbranch_scc1 %s' % (sIt, sIt, sSeg, L('L_p_loop')))
    p('s_branch L_end')


def gen_down(p, gemm_out):
    O, AF, BS = WK + 40, WK + 60, DS
    rdB = lambda n: 'ds_read_b128 %s, v%d offset:%d' % (vr(BS + 4 * (n & 3), 4), vWD, (n % 20) * 1024)
    rdA = lambda T: ['ds_read_b128 %s, v2 offset:%d' % (vr(AF + 4 * ks, 4), 2048 * T + 1024 * ks) for ks in (0, 1)]
    for l in rdA(0): p(l)
    for n in range(4): p(rdB(n))

    def pre(T, t, ks):
        n = 20 * T + 2 * t + ks
        r = [rdB(n + 4)] if n + 4 < 40 else []
        if n == 19: r += rdA(1)
        return r
    gemm_out(2, lambda T, ks: vr(AF + 4 * ks, 4), lambda T, t, ks: vr(BS + 4 * ((2 * t + ks) & 3), 4), sPB, O, pre)
```

```python
from layout import *

sX, sC, sWm, sW, sWo, sWg, sWu, sWd, sOut = 16, 20, 24, 28, 32, 36, 40, 44, 48
sY, sWi, sBud, sSel0, sSel1, sT, sT2, sT3 = 52, 53, 54, 56, 57, 58, 59, 60
DBG_RDY1, DBG_RDY2 = 192, 224
DBG_PAR = 32
vL = 0
vL16 = 1
RO8 = 'row_ror:8 row_mask:0xf bank_mask:0xf'
RO4 = 'row_ror:4 row_mask:0xf bank_mask:0xf'


def vr(b, n): return 'v[%d:%d]' % (b, b + n - 1)
def srd(s): return 's[%d:%d]' % (s, s + 3)


def xsum(p, r, t, op='add'):
    for sw in ('16', '32'):
        p('v_mov_b32 v%d, v%d\nv_permlane%s_swap_b32 v%d, v%d\nv_%s_f32 v%d, v%d, v%d' % (t, r, sw, r, t, op, r, r, t))


def arrive(p, off):
    l = p.newlabel('L_arr')
    p('''
    s_waitcnt vmcnt(0)
    s_barrier
    s_cmp_lg_u32 s12, 0
    s_cbranch_scc1 {l}
    v_mov_b32 v2, 1
    v_mov_b32 v3, {off}
    s_mov_b64 exec, 1
    buffer_atomic_add v2, v3, s[8:11], 0 offen
    s_mov_b64 exec, -1
    {l}:
    '''.format(l=l, off=off))


def wait_count(p, off, n, bud, v=2, st=sT):
    l = p.newlabel('L_cnt')
    p('''
    v_mov_b32 v{a}, {off}
    {l}:
    s_mov_b64 exec, 1
    buffer_load_dword v{d}, v{a}, s[8:11], 0 offen sc1
    s_mov_b64 exec, -1
    s_sub_u32 s{bud}, s{bud}, 1
    s_cbranch_scc1 L_end
    s_waitcnt vmcnt(0)
    v_readfirstlane_b32 s{st}, v{d}
    s_cmp_eq_u32 s{st}, {n}
    s_cbranch_scc1 {l}x
    s_sleep 8
    s_branch {l}
    {l}x:
    '''.format(l=l, off=off, n=n, bud=bud, a=v + 1, d=v, st=st))


def gen_clear_ctrl(p):
    p('s_lshl_b32 s%d, s%d, 2\ns_add_u32 s%d, s%d, s12\ns_lshl_b32 s%d, s%d, 10' % (sT, sWi, sT, sT, sT, sT))
    for ps in range(2):
        l = p.newlabel('L_clr')
        p('''
        s_cmp_ge_u32 s{t}, {end}
        s_cbranch_scc1 {l}
        s_and_b32 s{t2}, s{t}, 0x170000
        s_cmp_eq_u32 s{t2}, 0x70000
        s_cselect_b32 s{t2}, -1, 0
        s_cmp_ge_u32 s{t}, {mod}
        s_cselect_b32 s{t2}, -1, s{t2}
        v_mov_b32 v{r}, s{t2}
        v_mov_b32 v{r1}, s{t2}
        v_mov_b32 v{r2}, s{t2}
        v_mov_b32 v{r3}, s{t2}
        buffer_store_dwordx4 v[{r}:{r3}], v{l16}, s[4:7], s{t} offen sc1
        {l}:
        s_add_u32 s{t}, s{t}, 0xc0000
        '''.format(t=sT, t2=sT2, end=CTRL_END, mod=WS_MOD, l=l, r=4 + 4 * ps, r1=5 + 4 * ps, r2=6 + 4 * ps, r3=7 + 4 * ps, l16=vL16))


def gen_probe(p, cfg):
    p('''
    s_cmp_lg_u32 s12, 0
    s_cbranch_scc1 L_w_noprobe
    s_sub_u32 s74, s{wi}, 28
    s_cmp_ge_u32 s74, 4
    s_cbranch_scc1 L_w_noprobe
    s_mov_b32 s66, -1
    s_mov_b32 s67, -1
    s_lshl_b32 s{t}, s74, 21
    s_add_u32 s{t}, s{t}, {a0}
    s_add_u32 s{t2}, s{t}, 0x2000
    s_mov_b32 s{t3}, 3
    v_mov_b32 v2, -1
    s_mov_b64 exec, 1
    L_w_probe:
    s_waitcnt vmcnt(0)
    s_memtime s[68:69]
    s_waitcnt lgkmcnt(0)
    buffer_store_dword v2, v{l}, s[4:7], s{t} offen sc1
    s_waitcnt vmcnt(0)
    s_memtime s[70:71]
    s_waitcnt lgkmcnt(0)
    buffer_store_dword v2, v{l}, s[4:7], s{t2} offen sc1
    s_waitcnt vmcnt(0)
    s_memtime s[72:73]
    s_waitcnt lgkmcnt(0)
    s_sub_u32 s68, s70, s68
    s_min_u32 s66, s66, s68
    s_sub_u32 s70, s72, s70
    s_min_u32 s67, s67, s70
    s_sub_u32 s{t3}, s{t3}, 1
    s_cmp_lg_u32 s{t3}, 0
    s_cbranch_scc1 L_w_probe
    s_cmp_lt_u32 s67, s66
    s_cselect_b32 s{t}, 0x2000, 0
    s_lshl_b32 s{t}, s{t}, s74
    v_mov_b32 v2, s{t}
    buffer_atomic_or v2, v{l}, s[8:11], 0 offen offset:{o}
    s_mov_b64 exec, -1
    L_w_noprobe:
    s_barrier
    '''.format(t=sT, t2=sT2, t3=sT3, wi=sWi, a0=WS_KM, l=vL, o=DBG_PAR))


def read_par(p, dst, v):
    p('''
    v_mov_b32 v{a}, {o}
    buffer_load_dword v{d}, v{a}, s[8:11], 0 offen sc1
    s_waitcnt vmcnt(0)
    v_readfirstlane_b32 s{dst}, v{d}
    '''.format(a=v + 1, d=v, o=DBG_PAR, dst=dst))


def gen_clear_km(p):
    l = p.newlabel('L_ckm')
    p('''
    s_lshl_b32 s{t}, s{wi}, 2
    s_add_u32 s{t}, s{t}, s12
    s_lshl_b32 s{t}, s{t}, 10
    s_add_u32 s{t}, s{t}, {km}
    v_mov_b64 v[4:5], -1
    v_mov_b64 v[6:7], -1
    {l}:
    buffer_store_dwordx4 v[4:7], v{l16}, s[4:7], s{t} offen sc1
    s_add_u32 s{t}, s{t}, 0xc0000
    s_cmp_lt_u32 s{t}, {end}
    s_cbranch_scc1 {l}
    '''.format(t=sT, wi=sWi, km=WS_KM, l=l, l16=vL16, end=WS_KM + 0x800000))
    arrive(p, DBG_RDY2)


def gen_mod_loads(p, W, Cv):
    p('''
    v_lshrrev_b32 v2, 2, v{l}
    s_mul_i32 s{t}, s12, 160
    v_add_u32 v2, s{t}, v2             ; row
    v_lshlrev_b32 v3, 1, v2
    v_mul_u32_u24 v2, 7680, v2
    v_and_b32 v{w}, 3, v{l}
    v_lshl_add_u32 v2, v{w}, 4, v2
    s_mul_i32 s{t}, s{q}, 1280
    s_lshl_b32 s{t2}, s13, 6
    s_add_u32 s{t}, s{t}, s{t2}
    '''.format(l=vL, t=sT, t2=sT2, q=sT3, w=W))
    for i in range(10): p('buffer_load_ushort v%d, v3, %s, 0 offen offset:%d' % (Cv + i, srd(sC), 32 * i))
    for i in range(10):
        p('buffer_load_dwordx4 %s, v2, %s, s%d offen' % (vr(W + 4 * i, 4), srd(sWm), sT))
        p('s_add_u32 s%d, s%d, %d' % (sT, sT, 16 * 7680))


def gen_mod_compute(p, W, Cv, A):
    for i in range(10):
        c = Cv + i
        p('''
        v_lshlrev_b32 v{c}, 16, v{c}
        v_mul_f32 v{t}, 0xbfb8aa3b, v{c}
        v_exp_f32 v{t}, v{t}
        v_add_f32 v{t}, 1.0, v{t}
        v_rcp_f32 v{t}, v{t}
        v_mul_f32 v{c}, v{c}, v{t}
        v_cvt_pk_bf16_f32 v{c}, v{c}, v{c}
        v_and_b32 v{c}, 0xffff0000, v{c}
        '''.format(c=c, t=A + 8))
    for i in range(10):
        for d in range(4):
            w = W + 4 * i + d
            p('v_lshlrev_b32 v%d, 16, v%d\nv_and_b32 v%d, 0xffff0000, v%d' % (A + 8, w, A + 9, w))
            if i == 0: p('v_mul_f32 v%d, v%d, v%d\nv_mul_f32 v%d, v%d, v%d' % (A + 2 * d, A + 8, Cv, A + 2 * d + 1, A + 9, Cv))
            else: p('v_fmac_f32 v%d, v%d, v%d\nv_fmac_f32 v%d, v%d, v%d' % (A + 2 * d, A + 8, Cv + i, A + 2 * d + 1, A + 9, Cv + i))
    for ro in (RO4, RO8):
        for j in range(8): p('v_add_f32_dpp v%d, v%d, v%d %s' % (A + j, A + j, A + j, ro))
    for j in range(8): xsum(p, A + j, A + 8)
    p('''
    s_lshl_b32 s{t}, s12, 7
    v_lshlrev_b32 v2, 5, v{l}
    v_add_u32 v2, s{t}, v2
    s_mov_b64 exec, 15
    ds_write_b128 v2, {a0}
    ds_write_b128 v2, {a1} offset:16
    s_mov_b64 exec, -1
    s_waitcnt lgkmcnt(0)
    s_barrier
    v_and_b32 v2, 15, v{l}
    v_lshlrev_b32 v2, 3, v2
    '''.format(t=sT, l=vL, a0=vr(A, 4), a1=vr(A + 4, 4)))
    for w in range(4): p('ds_read_b64 %s, v2 offset:%d' % (vr(A + 2 * w, 2), 128 * w))
    p('''
    v_pk_add_f32 {a}, {a}, {b}
    v_pk_add_f32 {c}, {c}, {d}
    v_pk_add_f32 {a}, {a}, {c}
    v_cvt_pk_bf16_f32 v{A}, v{A}, v{A1}
    v_min_u32 v{A}, -2, v{A}
    '''.format(a=vr(A, 2), b=vr(A + 2, 2), c=vr(A + 4, 2), d=vr(A + 6, 2), A=A, A1=A + 1))


def gen_mod_store(p, A):
    l = p.newlabel('L_mst')
    p('''
    s_cmp_lg_u32 s12, 0
    s_cbranch_scc1 {l}
    s_mul_i32 s{t}, s{q}, 1280
    s_lshl_b32 s{t2}, s13, 6
    s_add_u32 s{t}, s{t}, s{t2}
    s_add_u32 s{t}, s{t}, {mod}
    v_lshlrev_b32 v2, 2, v{ln}
    s_mov_b64 exec, 0xffff
    buffer_store_dword v{A}, v2, s[4:7], s{t} offen sc1
    s_mov_b64 exec, -1
    {l}:
    '''.format(l=l, t=sT, t2=sT2, q=sT3, mod=WS_MOD, ln=vL, A=A))


def unpack(p, src, lo, hi):
    p('v_lshlrev_b32 v%d, 16, v%d\nv_and_b32 v%d, 0xffff0000, v%d' % (lo, src, hi, src))


def gen_ln1(p, XR):
    XF, SA, CA, T = 80, 160, 200, 8
    for i in range(40): unpack(p, XR + i, XF + 2 * i, XF + 2 * i + 1)
    p('v_pk_add_f32 %s, %s, %s' % (vr(T, 2), vr(XF, 2), vr(XF + 2, 2)))
    for i in range(2, 40): p('v_pk_add_f32 %s, %s, %s' % (vr(T, 2), vr(T, 2), vr(XF + 2 * i, 2)))
    p('v_add_f32 v%d, v%d, v%d' % (T, T, T + 1))
    p('v_add_f32_dpp v%d, v%d, v%d %s' % (T, T, T, RO8))
    xsum(p, T, T + 1)
    p('v_mul_f32 v%d, %s, v%d' % (T, f2hex(-1.0 / 640), T))
    for i in range(40): p('v_pk_add_f32 %s, %s, %s op_sel_hi:[1,0]' % (vr(XF + 2 * i, 2), vr(XF + 2 * i, 2), vr(T, 2)))
    p('v_pk_mul_f32 %s, %s, %s' % (vr(T, 2), vr(XF, 2), vr(XF, 2)))
    for i in range(1, 40): p('v_pk_fma_f32 %s, %s, %s, %s' % (vr(T, 2), vr(XF + 2 * i, 2), vr(XF + 2 * i, 2), vr(T, 2)))
    p('v_add_f32 v%d, v%d, v%d' % (T, T, T + 1))
    p('v_add_f32_dpp v%d, v%d, v%d %s' % (T, T, T, RO8))
    xsum(p, T, T + 1)
    p('v_mov_b32 v%d, %s\nv_fmac_f32 v%d, %s, v%d\nv_rsq_f32 v%d, v%d' % (T + 1, f2hex(1e-5), T + 1, f2hex(1.0 / 640), T, T, T + 1))
    for i in range(40): p('v_pk_mul_f32 %s, %s, %s op_sel_hi:[1,0]' % (vr(XF + 2 * i, 2), vr(XF + 2 * i, 2), vr(T, 2)))
    p('v_lshrrev_b32 v2, 3, v%d\nv_lshlrev_b32 v2, 4, v2\ns_mov_b32 s%d, %d' % (vL, sT, WS_MOD))
    p('L_ln_poll:')
    for i in range(10):
        p('buffer_load_dwordx4 %s, v2, s[4:7], s%d offen offset:%d sc1' % (vr(SA + 4 * i, 4), sT, 128 * i))
        p('buffer_load_dwordx4 %s, v2, s[4:7], s%d offen offset:%d sc1' % (vr(CA + 4 * i, 4), sT, 1280 + 128 * i))
    p('s_sub_u32 s{b}, s{b}, 1\ns_cbranch_scc1 L_end\ns_waitcnt vmcnt(0)'.format(b=sBud))
    p('v_max_u32 v%d, v%d, v%d' % (T, SA, SA + 1))
    for i in range(1, 40): p('v_max3_u32 v%d, v%d, v%d, v%d' % (T, T, SA + 2 * i, SA + 2 * i + 1))
    p('v_cmp_eq_u32 vcc, -1, v%d\ns_cbranch_vccnz L_ln_poll' % T)
    for i in range(40):
        unpack(p, CA + i, T, T + 1); unpack(p, SA + i, T + 2, T + 3)
        p('v_pk_add_f32 %s, %s, 1.0 op_sel_hi:[1,0]' % (vr(T, 2), vr(T, 2)))
        p('v_pk_fma_f32 %s, %s, %s, %s' % (vr(T, 2), vr(XF + 2 * i, 2), vr(T, 2), vr(T + 2, 2)))
        p('v_cvt_pk_bf16_f32 v%d, v%d, v%d' % (XR + i, T, T + 1))
    p('''
    v_lshrrev_b32 v2, 5, v{l}
    v_lshlrev_b32 v2, 11, v2
    v_bfe_u32 v3, v{l}, 3, 2
    v_lshl_add_u32 v2, v3, 8, v2
    v_and_b32 v3, 7, v{l}
    v_lshl_add_u32 v2, v3, 4, v2
    s_sub_u32 s{t}, s{wi}, 128
    s_mul_i32 s{t}, s{t}, 40960
    s_lshr_b32 s{t2}, s12, 1
    s_lshl_b32 s{t2}, s{t2}, 10
    s_add_u32 s{t}, s{t}, s{t2}
    s_and_b32 s{t2}, s12, 1
    s_lshl_b32 s{t2}, s{t2}, 7
    s_add_u32 s{t}, s{t}, s{t2}
    s_add_u32 s{t}, s{t}, {h}
    '''.format(l=vL, t=sT, t2=sT2, wi=sWi, h=WS_H))
    for i in range(10):
        p('buffer_store_dwordx4 %s, v2, s[4:7], s%d offen sc1\ns_add_u32 s%d, s%d, 4096' % (vr(XR + 4 * i, 4), sT, sT, sT))
    p('''
    s_sub_u32 s{t}, s{wi}, 128
    s_lshl_b32 s{t}, s{t}, 2
    s_add_u32 s{t}, s{t}, s12
    s_lshl_b32 s{t}, s{t}, 2
    s_add_u32 s{t}, s{t}, {fh}
    v_mov_b32 v2, 1
    s_waitcnt vmcnt(0)
    s_mov_b64 exec, 1
    buffer_store_dword v2, v{l}, s[4:7], s{t} offen sc1
    s_mov_b64 exec, -1
    '''.format(t=sT, wi=sWi, fh=WS_FH, l=vL))


def wreg(i, n=4):
    return 'a[%d:%d]' % (i, i + n - 1) if i < 256 else vr(192 + i - 256, n)


def put(p, i, hi, lo, sel, tmp):
    if i < 256: p('v_perm_b32 v%d, v%d, v%d, s%d\nv_accvgpr_write_b32 a%d, v%d' % (tmp, hi, lo, sel, i, tmp))
    else: p('v_perm_b32 v%d, v%d, v%d, s%d' % (192 + i - 256, hi, lo, sel))


def pipeline(units, depth, issue, finish):
    for n in range(min(depth - 1, len(units))): issue(units[n], n % depth)
    for n, u in enumerate(units):
        if n + depth - 1 < len(units): issue(units[n + depth - 1], (n + depth - 1) % depth)
        finish(u, n % depth)


def gen_qkv_w(p):
    p('''
    v_lshrrev_b32 v2, 4, v{l}
    v_lshlrev_b32 v2, 16, v2
    v_and_b32 v3, 15, v{l}
    v_lshl_add_u32 v2, v3, 3, v2
    s_and_b32 s{t}, s{y}, 1
    s_lshl_b32 s{t}, s{t}, 3
    s_lshr_b32 s{t2}, s13, 2
    s_add_u32 s61, s{t}, s{t2}          ; head pair
    s_lshl_b32 s{t}, s61, 9
    s_lshl_b32 s{t2}, s12, 7
    s_add_u32 s{t}, s{t}, s{t2}
    v_add_u32 v2, s{t}, v2
    '''.format(l=vL, t=sT, t2=sT2, y=sY))

    def issue(ks, slot):
        for j in range(8):
            p('s_mov_b32 s%d, %d\nbuffer_load_dwordx2 %s, v2, %s, s%d offen' % (sT, (32 * ks + j) * 8192, vr(16 + 16 * slot + 2 * j, 2), srd(sW), sT))

    def finish(ks, slot):
        b = 16 + 16 * slot
        for i4 in range(4):
            for t in range(4):
                put(p, 16 * ks + 4 * t + i4, b + 4 * i4 + 2 + (t >> 1), b + 4 * i4 + (t >> 1), sSel0 + (t & 1), 8 + t)
    pipeline(list(range(20)), 8, issue, finish)


def gen_qkv_loop(p, cfg):
    sN, sSrc, sBuf, sDst, sStr, sFlag, sDm = 62, 63, 64, 65, 66, 67, 68
    vT, vO, H, ACC, OUT = 2, 3, 8, 32, 64
    p('''
    v_lshrrev_b32 v2, 2, v{l}
    v_lshlrev_b32 v2, 6, v2
    v_and_b32 v3, 3, v{l}
    v_lshl_add_u32 v2, v3, 2, v2
    s_and_b32 s{t}, s13, 3
    s_lshl_b32 s{t}, s{t}, 4
    s_add_u32 s{t}, s{t}, {fh}
    L_q_hw:
    buffer_load_dword v3, v2, s[4:7], s{t} offen sc1
    s_sub_u32 s{b}, s{b}, 1
    s_cbranch_scc1 L_end
    s_waitcnt vmcnt(0)
    v_cmp_ne_u32 vcc, 1, v3
    s_cbranch_vccz L_q_hok
    s_sleep 4
    s_branch L_q_hw
    L_q_hok:
    s_and_b32 s{t}, s13, 3
    s_mul_i32 s{src}, s{t}, 40960
    s_mul_i32 s{buf}, s12, 10240
    s_add_u32 s{src}, s{src}, s{buf}
    s_add_u32 s{src}, s{src}, {h}
    s_lshl_b32 s{fl}, s61, 8
    s_lshl_b32 s{t2}, s{t}, 6
    s_add_u32 s{fl}, s{fl}, s{t2}
    s_lshr_b32 s{t2}, s{y}, 1
    s_lshl_b32 s{t2}, s{t2}, 4
    s_add_u32 s{fl}, s{fl}, s{t2}
    s_add_u32 s{fl}, s{fl}, {fq}
    ; destination: (segment*32 + head) << sh, sh = 13 for Q, 14 for K/V
    s_cmp_ge_u32 s{y}, 4
    s_cselect_b32 s{t3}, 13, 14
    s_mov_b32 s{dst}, {kv}
    s_cselect_b32 s{dst}, {q}, s{dst}
    s_lshl_b32 s{str}, 128, s{t3}
    s_lshl_b32 s{t}, s{t}, 5
    s_lshl_b32 s{t2}, s61, 1
    s_add_u32 s{t}, s{t}, s{t2}
    s_lshr_b32 s{t2}, s12, 1
    s_add_u32 s{t}, s{t}, s{t2}
    s_lshl_b32 s{t}, s{t}, s{t3}
    s_add_u32 s{dst}, s{dst}, s{t}
    s_mov_b32 s{n}, 0
    v_mov_b32 v{vt}, v{l16}
    '''.format(l=vL, t=sT, t2=sT2, t3=sT3, fh=WS_FH, b=sBud, src=sSrc, buf=sBuf, h=WS_H, fl=sFlag, y=sY, fq=WS_FQKV, dst=sDst,
               q=WS_Q, kv=WS_KV, str=sStr, n=sN, vt=vT, l16=vL16))

    def dma_list():
        r = []
        for i in range(10):
            pre = 's_add_u32 m0, s%d, %d\ns_add_u32 s%d, s%d, %d\n' % (sBuf, i * 1024, sDm, sSrc, i * 1024) if i % 4 == 0 else ''
            r.append(pre + 'buffer_load_dwordx4 v%d, s[4:7], s%d offen offset:%d sc1 lds' % (vL16, sDm, (i % 4) * 1024))
        r[-1] += '\ns_add_u32 s%d, s%d, %d\ns_xor_b32 s%d, s%d, 0x10000' % (sSrc, sSrc, 4 * 40960, sBuf, sBuf)
        return r

    def dma():
        for l in dma_list(): p(l)

    def flag():
        l = p.newlabel('L_qf')
        p('''
        s_barrier
        s_cmp_lg_u32 s12, 0
        s_cbranch_scc1 {l}
        v_mov_b32 v4, s{n}
        s_mov_b64 exec, 1
        buffer_store_dword v4, v{ln}, s[4:7], s{fl} offen sc1
        s_mov_b64 exec, -1
        {l}:
        '''.format(l=l, n=sN, ln=vL, fl=sFlag))
    EV(p, cfg, 8, 4)
    dma()
    p('s_lshr_b32 s%d, s%d, 1\ns_cmp_eq_u32 s%d, 1\ns_cbranch_scc1 L_q_v' % (sT, sY, sT))
    for isv in (0, 1):
        tag = 'v' if isv else 'k'
        if isv:
            p('L_q_v:')
            p('s_and_b32 s{t}, s12, 1\ns_lshl_b32 s{t}, s{t}, 10\ns_add_u32 s{t}, s{t}, 2048\nv_add_u32 v{o}, s{t}, v{l16}'.format(t=sT, o=vO, l16=vL16))
        else:
            p('''
            s_and_b32 s{t}, s12, 1
            s_lshl_b32 s{t}, s{t}, 1
            v_lshrrev_b32 v4, 5, v{l}
            v_add_u32 v4, s{t}, v4             ; wq
            s_sub_u32 s{t3}, s{t3}, 2
            v_lshlrev_b32 v4, s{t3}, v4
            v_bfe_u32 v5, v{l}, 4, 1
            v_lshl_add_u32 v4, v5, 9, v4
            v_and_b32 v5, 15, v{l}
            v_lshl_add_u32 v{o}, v5, 4, v4
            '''.format(t=sT, t3=sT3, l=vL, o=vO))
        def stores():
            r = []
            for k in range(4):
                if isv: r.append('s_add_u32 s%d, s%d, %d\nbuffer_store_dwordx4 %s, v%d, s[4:7], s%d offen sc1' % (sT, sDst, 4096 * k, vr(OUT + 4 * k, 4), vO, sT))
                else: r.append('buffer_store_dwordx4 %s, v%d, s[4:7], s%d offen offset:%d sc1' % (vr(OUT + 4 * k, 4), vO, sDst, (k >> 1) * 1024 + (k & 1) * 256))
            r[-1] += '\ns_add_u32 s%d, s%d, s%d' % (sDst, sDst, sStr)
            return r
        p('L_q_loop%s:' % tag)
        p('s_waitcnt vmcnt(0)\ns_barrier')
        rd = lambda ks, T: 'ds_read_b128 %s, v%d offset:%d' % (vr(H + 8 * (ks % 3) + 4 * T, 4), vT, ks * 2048 + T * 1024)
        for ks in (0, 1):
            for T in (0, 1): p(rd(ks, T))
        sl = stores(); dl = dma_list()
        for ks in range(20):
            for T in (0, 1):
                for t in range(4):
                    a = vr(ACC + 16 * T + 4 * t, 4); h = vr(H + 8 * (ks % 3) + 4 * T, 4); w = wreg(16 * ks + 4 * t)
                    p('v_mfma_f32_16x16x32_bf16 %s, %s, %s, %s' % (a, h if isv else w, w if isv else h, a if ks else '0'))
                    if t == 0 and ks + 2 < 20: p(rd(ks + 2, T))
                    if t == 2 and sl:
                        l = p.newlabel('L_qs'); p('s_cmp_eq_u32 s%d, 0\ns_cbranch_scc1 %s' % (sN, l)); p(sl.pop(0)); p(l + ':')
                    elif t == 2 and T == 0 and dl: p(dl.pop(0))
            if ks == 11:
                assert not dl
                p('s_waitcnt vmcnt(10)'); flag()
        p('s_add_u32 s%d, s%d, 1\nv_xor_b32 v%d, 0x10000, v%d' % (sN, sN, vT, vT))
        for k in range(4):
            o = OUT + 4 * k
            if isv:
                for T in (0, 1):
                    for hh in (0, 1):
                        a = ACC + 16 * T + 4 * k + 2 * hh
                        p('v_cvt_pk_bf16_f32 v%d, v%d, v%d' % (o + 2 * T + hh, a, a + 1))
            else:
                T, u = k >> 1, k & 1
                for ii in (0, 1):
                    for hh in (0, 1):
                        a = ACC + 16 * T + 8 * hh + 2 * u + ii
                        p('v_cvt_pk_bf16_f32 v%d, v%d, v%d' % (o + 2 * ii + hh, a, a + 4))
        p('s_cmp_lt_u32 s%d, 16\ns_cbranch_scc1 L_q_loop%s' % (sN, tag))
        for l in stores(): p(l)
        if not isv: p('s_branch L_q_done')
    p('L_q_done:')
    p('s_waitcnt vmcnt(0)')
    flag()


def gen_worker(p, cfg):
    srds = ((sX, 0, 2621440), (sC, 88, 1280), (sWm, 96, 4915200), (sWo, 40, 5242880), (sWg, 64, 2211840), (sWu, 72, 2211840),
            (sWd, 80, 2211840), (sOut, 104, 2621440))
    for sr, off, size in srds: p('s_load_dwordx2 s[%d:%d], s[0:1], %d' % (sr, sr + 1, off))
    p('s_load_dwordx4 s[60:63], s[0:1], 16\ns_load_dwordx2 s[64:65], s[0:1], 32')
    p('''
    s_sub_u32 s{y}, s14, 2
    s_lshl_b32 s{wi}, s{y}, 5
    s_add_u32 s{wi}, s{wi}, s13
    s_mov_b32 s{b}, 1000000
    s_mov_b32 s{s0}, 0x05040100
    s_mov_b32 s{s1}, 0x07060302
    v_lshlrev_b32 v{l16}, 4, v{l}
    s_waitcnt lgkmcnt(0)
    s_cmp_ge_u32 s{y}, 2
    s_cselect_b64 s[{w}:{w1}], s[64:65], s[62:63]
    s_cmp_ge_u32 s{y}, 4
    s_cselect_b64 s[{w}:{w1}], s[60:61], s[{w}:{w1}]
    '''.format(y=sY, wi=sWi, b=sBud, s0=sSel0, s1=sSel1, l16=vL16, l=vL, w=sW, w1=sW + 1))
    for sr, off, size in srds + ((sW, 0, 5242880),): p('s_mov_b32 s%d, %d\ns_mov_b32 s%d, 0x20000' % (sr + 2, size, sr + 3))
    gen_clear_ctrl(p)
    p('s_cmp_lt_u32 s%d, 4\ns_cbranch_scc1 L_w_kv' % sY)
    XR = 40
    p('''
    v_and_b32 v2, 7, v{l}
    v_mul_u32_u24 v2, 1280, v2
    v_lshrrev_b32 v3, 3, v{l}
    v_lshl_add_u32 v2, v3, 4, v2
    s_sub_u32 s{t}, s{wi}, 128
    s_lshl_b32 s{t}, s{t}, 2
    s_add_u32 s{t}, s{t}, s12
    s_mul_i32 s{t}, s{t}, 10240
    '''.format(l=vL, t=sT, wi=sWi))
    for i in range(10): p('buffer_load_dwordx4 %s, v2, %s, s%d offen offset:%d' % (vr(XR + 4 * i, 4), srd(sX), sT, 128 * i))
    p('s_sub_u32 s%d, s%d, 4\ns_cmp_ge_u32 s13, 20\ns_cbranch_scc1 L_w_nomod' % (sT3, sY))
    gen_mod_loads(p, 80, 120)
    arrive(p, DBG_RDY1)
    gen_mod_compute(p, 80, 120, 16)
    wait_count(p, DBG_RDY1, 192, sBud)
    gen_mod_store(p, 16)
    p('s_branch L_w_ln\nL_w_nomod:')
    arrive(p, DBG_RDY1)
    wait_count(p, DBG_RDY1, 192, sBud)
    p('L_w_ln:')
    EV(p, cfg, 3)
    gen_ln1(p, XR)
    EV(p, cfg, 4)
    gen_clear_km(p)
    p('s_branch L_w_w\nL_w_kv:')
    arrive(p, DBG_RDY1)
    gen_probe(p, cfg)
    p('L_w_w:')
    EV(p, cfg, 5)
    gen_qkv_w(p)
    EV(p, cfg, 6)
    p('s_cmp_ge_u32 s%d, 4\ns_cbranch_scc1 L_w_q2' % sY)
    gen_clear_km(p)
    wait_count(p, DBG_RDY1, 192, sBud)
    p('L_w_q2:')
    EV(p, cfg, 7)
    EV(p, cfg, 102, clk=True)
    gen_qkv_loop(p, cfg)
    EV(p, cfg, 9)
    EV(p, cfg, 103, clk=True)
    p('s_cmp_ge_u32 s%d, 4\ns_cbranch_scc1 L_w_post\ns_cmp_ge_u32 s13, 20\ns_cbranch_scc1 L_w_post' % sY)
    p('s_add_u32 s%d, s%d, 2' % (sT3, sY))
    gen_mod_loads(p, 80, 120)
    gen_mod_compute(p, 80, 120, 16)
    gen_mod_store(p, 16)
    p('L_w_post:')
    if cfg.get('nopost'): p('s_branch L_end')
    else:
        import post
        post.gen_post(p, cfg)
```

```python
import sys
from asmgen import Prog
from layout import *
import chain, worker
NAME = 'adaLN_cond__memory_aug_recurrent_mem_tr__glu_gated_reglu__prompt'
def body(cfg):
    p = Prog()
    p('''
    s_cmp_ge_u32 s2, 256
    s_cbranch_scc1 L_exit
    s_load_dwordx4 s[16:19], s[0:1], 112
    EV0
    s_getreg_b32 s14, hwreg(HW_REG_XCC_ID)
    s_and_b32 s14, s14, 7
    s_lshl_b32 s14, s14, 2
    s_lshr_b32 s14, XMAP, s14
    s_and_b32 s14, s14, 7
    v_lshrrev_b32 v1, 6, v0
    v_readfirstlane_b32 s12, v1
    v_and_b32 v0, 63, v0
    ; ticket word: dies 0,1 in the first line of d_debug, the others in the second
    s_lshl_b32 s15, s14, 6
    s_lshl_b32 s20, s14, 2
    s_add_u32 s20, s20, 120
    s_cmp_lt_u32 s14, 2
    s_cselect_b32 s15, s15, s20
    v_mov_b32 v2, 0
    v_mov_b32 v3, 1
    s_waitcnt lgkmcnt(0)
    s_mov_b32 s4, s18
    s_mov_b32 s5, s19
    s_mov_b32 s6, %d
    s_mov_b32 s7, 0x20000
    s_mov_b32 s8, s16
    s_mov_b32 s9, s17
    s_mov_b32 s10, 256
    s_mov_b32 s11, 0x20000
    s_cmp_lg_u32 s12, 0
    s_cbranch_scc1 L_noticket
    s_mov_b64 exec, 1
    buffer_atomic_add v3, v2, s[8:11], s15 offen sc0
    s_waitcnt vmcnt(0)
    ds_write_b32 v2, v3
    s_waitcnt lgkmcnt(0)
    s_mov_b64 exec, -1
    L_noticket:
    s_barrier
    ds_read_b32 v3, v2
    s_waitcnt lgkmcnt(0)
    v_readfirstlane_b32 s13, v3
    s_cmp_ge_u32 s13, 32
    s_cbranch_scc1 L_end
    s_barrier
    '''.replace('XMAP', cfg.get('xmap', '0x76541023')).replace('EV0', 's_memrealtime s[96:97]' if cfg.get('ev') else '') % WS_SIZE)
    if cfg.get('ev'):
        EV(p, cfg, 1)
        p('v_mov_b32 v2, s96\ns_sub_u32 s94, s94, 4\nbuffer_store_dword v2, v3, s[4:7], s94 offen')
    EV(p, cfg, 100, clk=True)
    p('s_cmp_ge_u32 s14, 2\ns_cbranch_scc0 L_chain')
    worker.gen_worker(p, cfg)
    p('L_end:\ns_waitcnt vmcnt(0) lgkmcnt(0)')
    EV(p, cfg, 2)
    EV(p, cfg, 101, clk=True)
    p('L_exit:\ns_endpgm')
    p('L_chain:')
    c = dict(cfg); c['flags'] = True
    def go(p):
        EV(p, cfg, 3, 26)
        worker.wait_count(p, worker.DBG_RDY1, 192, chain.sBudget, 26, 40)
        worker.wait_count(p, worker.DBG_RDY2, 192, chain.sBudget, 26, 40)
        worker.read_par(p, chain.sPar, 26)
        EV(p, cfg, 4, 26)
    c['wait_go'] = go
    chain.gen_chain(p, c)
    return p.finalize(cfg.get('verbose', False))
def full(cfg):
    ref = open('cdna_kernels/%s.s.ref' % NAME).read().split('\n')
    head = [l for l in ref if l.startswith(';') and '@launch' not in l and 'Override launch' not in l and 'grid=ceil' not in l]
    out = '\n'.join(head) + '\n; @launch grid=(256,1,1) block=(256,1,1) lds=163840\n'
    out += '''.amdgcn_target "amdgcn-amd-amdhsa--gfx950"
.text
.globl {n}_kernel
.p2align 8
.type {n}_kernel,@function
{n}_kernel:
'''.format(n=NAME)
    out += body(cfg)
    out += '''.section .rodata,"a"
.p2align 6
.amdhsa_kernel {n}_kernel
  .amdhsa_next_free_vgpr 512
  .amdhsa_next_free_sgpr 102
  .amdhsa_accum_offset 256
  .amdhsa_group_segment_fixed_size 0
  .amdhsa_kernarg_size 128
  .amdhsa_user_sgpr_count 2
  .amdhsa_user_sgpr_kernarg_segment_ptr 1
  .amdhsa_system_sgpr_workgroup_id_x 1
  .amdhsa_float_denorm_mode_32 3
.end_amdhsa_kernel
'''.format(n=NAME)
    return out
if __name__ == '__main__':
    cfg = eval(sys.argv[1]) if len(sys.argv) > 1 else {}
    cfg['verbose'] = True
    dst = sys.argv[2] if len(sys.argv) > 2 else 'cdna_kernels/%s.s' % NAME
    open(dst, 'w').write(full(cfg))
```

```python
from layout import *

vL16, vIdx, vAw, vA8, vLW, vR3, vSR, vSR1, vOA, vR2, vPerm, vRA, vRB, vR1, vJunk = 0, 1, 2, 3, 4, 5, 6, 7, 8, 9, 10, 12, 13, 14, 15
ACC, AV, ST0, ST1, VACC, AA, XX, AK = 16, 32, 40, 48, 56, 64, 84, 88
HACC = AA
OA = ACC
sWq, sWk, sWv, sWo, sMem = 16, 20, 24, 28, 32
sHint, sHintW, sScale, sOne = 32, 33, 34, 36
sPart, sLine, sPiece, sRed, sStep, sTag, sTagAdd, sMask, sRes, sArm, sCons, sPartE, sHopB = 42, 43, 47, 48, 49, 50, 51, 52, 53, 54, 55, 56, 57
sRemW, sRemR, sKoff, sVoff, sKM, sVM, sBudget, sStep1 = 58, 59, 61, 62, 63, 64, 66, 67
mRed, mK, mKM, mEven, mHalf = 70, 72, 74, 76, 68
sNot, sFlagKV, sNeed, sFlagA = 78, 80, 3, 15
sSel0, sSel1 = 60, 65
sVMn = 81
LDS_SC, LDS_W = 10240, 16384
PSTR = 5120 + 128
QK = (('q', 0), ('k', 0), ('q', 1), ('k', 1))
BUF = {0: 0, 4: 3, 1: 1, 2: 2, 3: 0, 5: 4, 9: 3, 6: 1, 7: 2, 8: 0}


def vr(b, n): return 'v[%d:%d]' % (b, b + n - 1)


GR, GBAR, GRI = 22, 7, 3


def plan(cfg):
    border = []
    qk = lambda s: [(m, s, t) for m, t in QK]
    for s in (0, 4, 1, 2, 3): border += qk(s) + [('v', s, 0), ('v', s, 1)]
    border += qk(5) + qk(9)
    for m, t in QK: border += [(m, s, t) for s in (6, 7, 8)]
    vorder = [('v', s, t) for s in (5, 9, 6, 7, 8) for t in (0, 1)]
    horder = [('o', 2, 0), ('o', 0, 0), ('o', 1, 0), ('o', 2, 1), ('o', 0, 1), ('o', 2, 2), ('o', 1, 1), ('o', 2, 3), ('o', 0, 2), ('o', 0, 3), ('o', 1, 2), ('o', 1, 3)]
    where = {}
    n = 0
    gR = cfg.get('gR', GR); gb = gR + cfg.get('gbar', GBAR)
    busy = {0, 1, 2, 5, cfg.get('gRi', GRI), gR, gb, max(gb + 1, 17), max(gb + 2, 23), max(gb + 3, 29)}
    g = cfg.get('gvm', 12) or gb
    for _ in range(3):
        while g in busy: g += 1
        busy.add(g); g += cfg.get('vsp', 4)
    lb = [0, 1]
    while len(lb) < 14:
        g = lb[-2]
        for _ in (0, 1):
            while g in busy: g += 1
            busy.add(g)
        lb.append(max(g + cfg.get('llat', 4), lb[-1] + 1))
    assert lb[-1] <= 47, lb
    for i in lb:
        where[border[i]] = ('l', n, (ST0, ST1)[n & 1]); n += 1
    for f in (('v', 9, 0), ('v', 9, 1)):
        where[f] = ('l', n, (ST0, ST1)[n & 1]); n += 1
    assert n == 16
    for j, st in enumerate((ST0, ST1, VACC, ST0)): where[('o', 2, j)] = ('l', 16 + j, st)
    for n, f in enumerate([('v', s, t) for s in (5, 6, 7, 8) for t in (0, 1)]): where[f] = ('r', 'v', 192 + 8 * n)
    res = [('a', 8 * i) for i in range(32)] + [('v', 96 + 8 * i) for i in range(12)]
    for f in horder + border:
        if f not in where: where[f] = ('r',) + res.pop(0)
    assert not res, res
    return border, vorder, horder, where


def breg(w, h=None):
    k = w[1] if w[0] == 'r' else 'v'
    if h is None: return '%s[%d:%d]' % (k, w[2], w[2] + 7)
    return '%s[%d:%d]' % (k, w[2] + 4 * h, w[2] + 4 * h + 3)


def ld_stage(w):
    return ['ds_read_b128 %s, v%d offset:%d' % (vr(w[2] + 4 * h, 4), vLW, w[1] * 2048 + h * 1024) for h in (0, 1)]


def nops(n):
    r = []
    while n > 0:
        k = min(n, 16); r.append('s_nop %d' % (k - 1)); n -= k
    return '\n'.join(r)


def gen_chain(p, cfg):
    border, vorder, horder, where = plan(cfg)
    stamp = cfg.get('stamp', False)
    flags = cfg.get('flags', False)
    trace = cfg.get('trace')
    tnames = cfg.setdefault('tnames', [])
    TP = list(range(82, 102, 2)) + list(range(16, 28, 2))

    def TS(name):
        if not trace: return []
        r = TP[len(tnames)]; tnames.append(name)
        return ['.long 0x%08x' % (0xc0900000 | (r << 6)), '.long 0']

    def T(name):
        for l in TS(name): p(l)

    def CNT(i, n=1):
        if stamp: p('s_add_u32 s%d, s%d, %d' % (16 + i, 16 + i, n))

    srds = ((sWq, 16, 5242880), (sWk, 24, 5242880), (sWv, 32, 5242880), (sWo, 40, 5242880), (sMem, 8, 10240))
    for sr, off, size in srds: p('s_load_dwordx2 s[%d:%d], s[0:1], %d' % (sr, sr + 1, off))
    p('''
    v_and_b32 v16, 15, v0
    v_lshrrev_b32 v17, 4, v0
    ; raw-load offsets: v5 = q/k/v rows 8g, 8 columns per lane; v6/v7 = Wo rows 32(g>>1)+(g&1)
    v_lshlrev_b32 v5, 16, v17
    v_lshl_add_u32 v5, v16, 4, v5
    s_lshl_b32 s40, s13, 8
    v_add_u32 v5, s40, v5
    v_lshrrev_b32 v18, 1, v17
    v_and_b32 v19, 1, v17
    v_lshl_add_u32 v18, v18, 5, v19
    v_mul_u32_u24 v18, 1280, v18
    s_mul_i32 s40, s13, 163840
    s_mul_i32 s41, s14, 640
    s_add_u32 s40, s40, s41
    v_add_u32 v18, s40, v18
    s_lshl_b32 s41, s12, 7
    v_lshl_add_u32 v6, v16, 3, v18
    v_add_u32 v6, s41, v6
    s_and_b32 s41, s12, 1
    s_lshl_b32 s41, s41, 6
    s_add_u32 s41, s41, 512
    v_lshl_add_u32 v7, v16, 2, v18
    v_add_u32 v7, s41, v7
    v_lshlrev_b32 v0, 4, v0
    s_lshl_b32 s40, s12, 10
    v_add_u32 v{aw}, s40, v0
    ; LDS weights: 20 fragments for waves 0,1, 16 for waves 2,3
    s_xor_b32 s41, s12, 2
    s_lshl_b32 s41, s41, 15
    s_cmp_eq_u32 s12, 1
    s_cselect_b32 s40, 8192, 0
    s_add_u32 s40, s40, s41
    s_add_u32 s40, s40, {lw}
    v_add_u32 v{vlw}, s40, v0
    ; inbox read addresses v8 (plain) and v12..v15 (source wave w^slot)
    s_lshl_b32 s40, s12, 12
    v_add_u32 v8, s40, v0
    v_add_u32 v12, s40, v{aw}
    v_xor_b32 v13, 1024, v12
    v_xor_b32 v14, 2048, v12
    v_xor_b32 v15, 3072, v12
    s_mov_b32 s{s0}, 0x05040100
    s_mov_b32 s{s1}, 0x07060302
    ; row bases: s36 local group, s37 remote group, s38 extras
    s_mul_i32 s40, s14, 5
    s_add_u32 s36, s40, s12
    s_lshl_b32 s36, s36, 19
    s_sub_u32 s41, 5, s40
    s_add_u32 s37, s41, s12
    s_lshl_b32 s37, s37, 19
    s_cmp_lt_u32 s12, 2
    s_cselect_b32 s38, s40, s41
    s_add_u32 s38, s38, 4
    s_lshl_b32 s38, s38, 1
    s_and_b32 s40, s12, 1
    s_add_u32 s38, s38, s40
    s_lshl_b32 s38, s38, 18
    s_mov_b32 s{bud}, 1000000
    s_waitcnt lgkmcnt(0)
    '''.format(aw=vAw, lw=LDS_W, vlw=vLW, s0=sSel0, s1=sSel1, bud=sBudget))
    for sr, off, size in srds: p('s_mov_b32 s%d, %d\ns_mov_b32 s%d, 0x20000' % (sr + 2, size, sr + 3))
    for j in range(4): p('s_xor_b32 s40, s12, %d\ns_mul_i32 s%d, s40, 2560' % (j, 42 + j))
    if stamp: p('s_memtime s[98:99]')

    units = []
    last = [('v', 1, 0), ('v', 1, 1)]
    for m in cfg.get('worder', 'qkv'):
        units += [u for u in ((m, 0, 0), (m, 0, 1), (m, 1, 0), (m, 1, 1), (m, 2, 0)) if u not in last]
    for j, pos in enumerate(cfg.get('opos', (13, 14, 15, 16))): units.insert(pos, ('o', j))
    units += last
    RING = (16, 48, 192, 224)
    ring = lambda n: RING[(n + 3) % 4]
    assert ring(len(units) - 2) == 16 and ring(len(units) - 1) == 48
    TMP = 80

    def issue(n):
        u = units[n]; b = ring(n)
        if u[0] == 'o':
            for k in range(8):
                p('s_add_u32 s40, s%d, %d' % (42 + u[1], (64 * (k >> 2) + 16 * ((k >> 1) & 1) + 8 * (k & 1)) * 1280))
                p('buffer_load_dwordx2 %s, v6, s[%d:%d], s40 offen' % (vr(b + 2 * k, 2), sWo, sWo + 3))
                p('buffer_load_dword v%d, v7, s[%d:%d], s40 offen' % (b + 16 + k, sWo, sWo + 3))
            return
        sr = {'q': sWq, 'k': sWk, 'v': sWv}[u[0]]
        for k in range(8):
            i4 = k >> 1
            p('s_add_u32 s40, s%d, %d' % (36 + u[1], (32 * u[2] + 4 * (i4 & 1) + 2 * (i4 >> 1) + (k & 1)) * 8192))
            p('buffer_load_dwordx4 %s, v5, s[%d:%d], s40 offen' % (vr(b + 4 * k, 4), sr, sr + 3))

    def finish(n):
        u = units[n]; b = ring(n)
        if u[0] == 'o':
            for blk in range(3):
                w = where[('o', blk, u[1])]
                for d in range(8):
                    k = 2 * (d >> 1)
                    lo, hi = (b + 2 * k + blk, b + 2 * k + 2 + blk) if blk < 2 else (b + 16 + k, b + 17 + k)
                    p('v_perm_b32 v%d, v%d, v%d, s%d' % (TMP + d, hi, lo, sSel1 if d & 1 else sSel0))
                if blk < 2:
                    assert w[1] == 'a'
                    for d in range(8): p('v_accvgpr_write_b32 a%d, v%d' % (w[2] + d, TMP + d))
                else:
                    l = p.newlabel('L_c_x')
                    p('s_cmp_ge_u32 s12, 2\ns_cbranch_scc1 ' + l)
                    for h in (0, 1): p('ds_write_b128 v%d, %s offset:%d' % (vLW, vr(TMP + 4 * h, 4), w[1] * 2048 + h * 1024))
                    p('s_waitcnt lgkmcnt(0)\n%s:' % l)
            return
        for par in (0, 1):
            for wd in range(4):
                for i4 in range(4):
                    p('v_perm_b32 v%d, v%d, v%d, s%d' % (TMP + 4 * wd + i4, b + 8 * i4 + 4 + wd, b + 8 * i4 + wd, sSel1 if par else sSel0))
            p('s_barrier')
            for wd in range(4): p('ds_write_b128 v%d, %s offset:%d' % (vAw, vr(TMP + 4 * wd, 4), wd * 4096))
            p('s_waitcnt lgkmcnt(0)\ns_barrier')
            back = []
            for k in range(4):
                if u[1] < 2: w, h, ad = where[(u[0], 5 * u[1] + k, par)], u[2], 'v%d' % (12 + k)
                else: w, h, ad = where[(u[0], 4 + 5 * (k >> 1), par)], k & 1, 'v8 offset:%d' % (k * 1024)
                if w[0] == 'r': p('ds_read_b128 %s, %s' % (breg(w, h), ad))
                else:
                    p('ds_read_b128 %s, %s' % (vr(TMP + 4 * k, 4), ad))
                    back.append('ds_write_b128 v%d, %s offset:%d' % (vLW, vr(TMP + 4 * k, 4), w[1] * 2048 + h * 1024))
            for l in back: p(l)
            p('s_waitcnt lgkmcnt(0)')

    def clear():
        p('''
        s_lshl_b32 s40, s13, 2
        s_add_u32 s40, s40, s12
        s_mul_i32 s41, s14, {xs}
        s_lshl_b32 s46, s40, 8
        s_add_u32 s46, s46, s41
        s_add_u32 s46, s46, {hopb}
        s_lshl_b32 s40, s40, 11
        s_add_u32 s40, s40, s41
        s_add_u32 s40, s40, {hopa}
        v_mov_b64 v[80:81], 0
        v_mov_b64 v[82:83], 0
        v_mov_b64 v[84:85], -1
        v_mov_b64 v[86:87], -1
        v_lshrrev_b32 v88, 2, v0
        buffer_store_dwordx4 v[80:83], v0, s[4:7], s40 offen
        buffer_store_dwordx4 v[80:83], v0, s[4:7], s40 offen offset:1024
        buffer_store_dword v84, v88, s[4:7], s46 offen
        '''.format(xs=WS_HOPX, hopb=WS_HOPB, hopa=WS_HOPA, rem=WS_REM))
    DP = cfg.get('wdepth', 2)
    for n in range(DP): issue(n)
    for n in range(len(units)):
        if n == 2 and 'arrive' in cfg: clear()
        if cfg.get('wwait', 1): p('s_waitcnt vmcnt(%d)' % sum(16 if units[k][0] == 'o' else 8 for k in range(n + 1, min(n + DP, len(units)))))
        if n + DP < len(units): issue(n + DP)
        finish(n)
        if cfg.get('ev') == 3: EV(p, cfg, 80 + n, 10)
        if n == 5 and 'arrive' in cfg: cfg['arrive'](p)
    if stamp: p('s_memtime s[100:101]\ns_waitcnt lgkmcnt(0)\ns_sub_u32 s15, s100, s98')

    p('''
    v_lshrrev_b32 v18, 4, v0           ; lane
    v_and_b32 v16, 15, v18             ; c
    v_lshrrev_b32 v17, 4, v18          ; g
    v_and_b32 v20, 1, v18              ; hb = c&1
    v_mov_b32 v21, 0x44444444
    v_mov_b32 v22, 0xeeeeeeee
    v_cmp_eq_u32 vcc, 1, v20
    v_cndmask_b32 v{idx}, v21, v22, vcc
    s_lshl_b32 s40, s12, 9
    s_add_u32 s40, s40, 8192
    v_lshrrev_b32 v21, 1, v0
    v_add_u32 v{a8}, s40, v21
    v_and_b32 v19, 7, v16              ; c&7
    v_lshrrev_b32 v25, 1, v16          ; m = c>>1
    s_mul_i32 s41, s12, 1536
    s_add_u32 m0, s41, {sc}
    ; o exchange read: 8192 + 512 w + 128 g + 16 m
    v_lshlrev_b32 v21, 7, v17
    v_lshl_add_u32 v22, v25, 4, v21
    v_add_u32 v{oa}, s40, v22
    ; score read: LDS_SC + 544 hb + 272 (m&1) + 64 (m>>1) + 16 g
    v_and_b32 v22, 1, v25
    v_mul_u32_u24 v22, 272, v22
    v_lshrrev_b32 v23, 1, v25
    v_lshl_add_u32 v26, v23, 6, v22
    v_mul_u32_u24 v22, 544, v20
    v_add_u32 v22, v22, v26
    v_lshl_add_u32 v22, v17, 4, v22
    v_add_u32 v{sr}, {sc}, v22
    ; mem-key read: LDS_SC + 1088 + 64 (m>>1) + 4 (4 g + 2 (m&1) + hb)
    v_lshlrev_b32 v22, 6, v23
    v_lshl_add_u32 v22, v17, 4, v22
    v_and_b32 v24, 3, v16
    v_lshl_add_u32 v22, v24, 2, v22
    v_add_u32 v{sr1}, {sc1}, v22
    ; identity for the transposing MFMA: lane (col,g): slot j <-> col == 4g+j
    v_mov_b32 v23, 0x3f80
    v_mov_b32 v24, 0x3f800000
    v_cmp_eq_u32 vcc, 1, v20
    v_cndmask_b32 v23, v23, v24, vcc
    v_lshlrev_b32 v24, 1, v17
    v_cmp_eq_u32 vcc, v25, v24
    v_cndmask_b32 v{pm0}, 0, v23, vcc
    v_add_u32 v24, 1, v24
    v_cmp_eq_u32 vcc, v25, v24
    v_cndmask_b32 v{pm1}, 0, v23, vcc
    ; reducer addresses
    v_lshrrev_b32 v22, 3, v18
    v_mul_u32_u24 v22, {pstr}, v22
    v_lshl_add_u32 v{ra}, v19, 4, v22
    v_and_b32 v22, 1, v19
    v_lshl_add_u32 v22, v17, 1, v22
    v_lshrrev_b32 v23, 2, v19
    v_lshl_add_u32 v22, v23, 4, v22
    v_lshlrev_b32 v22, 4, v22
    v_bfe_u32 v23, v19, 1, 1
    v_lshl_add_u32 v{rb}, v23, 3, v22
    s_mul_i32 s58, s14, {xs}           ; this twin's hop buffers
    s_add_u32 s{hopb}, s58, {HOPB}
    s_add_u32 s58, s58, {HOPA}
    s_mul_i32 s{part}, s13, {pstr}
    s_add_u32 s{part}, s{part}, s58
    s_sub_u32 s{pe}, s{part}, 4096
    ; reducer line n: wave 0 -> rank, wave 1 -> 32 + rank (rank < 8)
    s_lshl_b32 s40, s12, 5
    s_add_u32 s40, s40, s13
    s_cmp_lt_u32 s40, 40
    s_cselect_b32 s{red}, 1, 0
    s_lshr_b32 s53, s40, 3             ; kstep of the image
    s_and_b32 s54, s40, 1              ; half of the kstep
    s_bfe_u32 s55, s40, 0x20001        ; row pair
    s_bfe_u32 s61, s40, 0x10002
    s_and_b32 s62, s40, 3
    s_cmp_eq_u32 s12, 0
    s_cselect_b32 s54, s54, s61
    s_cselect_b32 s55, s55, s62
    s_lshl_b32 s40, s40, 7
    s_add_u32 s{l0}, s40, s58
    s_add_u32 s{l1}, s{l0}, {o1}
    s_add_u32 s{l2}, s{l0}, {o2}
    s_add_u32 s{l3}, s{l0}, {o3}
    s_lshl_b32 s41, s53, 1
    s_add_u32 s41, s41, s54            ; 2 kstep + half
    s_lshl_b32 s{piece}, s41, 9
    s_lshl_b32 s40, s55, 6
    s_add_u32 s{piece}, s{piece}, s40
    ; mem0 gather: row 2 pair + g', columns 320 x + 32 (2 kstep + half) + 4 i
    s_lshl_b32 s41, s41, 6
    s_mul_i32 s40, s14, 640
    s_add_u32 s41, s41, s40
    s_mul_i32 s40, s55, 2560
    s_add_u32 s41, s41, s40
    v_mul_u32_u24 v22, 1280, v17
    v_lshl_add_u32 v22, v19, 3, v22
    buffer_load_dwordx2 v[24:25], v22, s[32:35], s41 offen
    s_mov_b32 s70, 0x00ff00ff
    s_mov_b32 s71, 0
    s_mov_b32 s72, 0x33333333
    s_mov_b32 s73, 0x33333333
    s_cmp_eq_u32 s14, 0
    PUBMASK
    s_mov_b32 s76, 0x55555555
    s_mov_b32 s77, 0x55555555
    s_mov_b32 s{mask}, 0x10000
    s_mov_b32 s36, 0x3f80
    ; K/V, k_mem / v_mem
    s_lshl_b32 s40, s13, 2
    s_add_u32 s40, s40, s12
    s_lshl_b32 s41, s40, 12
    s_add_u32 s{k}, s41, {KV}
    s_mov_b32 s{v}, s{k}
    s_lshr_b32 s41, s13, 2
    s_lshl_b32 s41, s41, 14
    s_and_b32 s53, s13, 3
    s_lshl_b32 s53, s53, 11
    s_add_u32 s41, s41, s53
    s_add_u32 s{vm}, s41, {KM}         ; + 8192 + 512 w through vA8
    s_lshl_b32 s53, s12, 9
    s_add_u32 s{km}, s{vm}, s53
    ; twin mailbox: [step][writer][16 KiB]
    s_lshl_b32 s40, s14, 14
    s_add_u32 s{rw}, s40, {REM}
    s_xor_b32 s{rr}, s{rw}, 0x4000
    s_add_u32 s{rw}, s{rw}, s{piece}
    s_add_u32 s{piece}, s{piece}, s{hopb}
    s_mov_b32 s{step}, 0
    s_mov_b32 s81, {PAR}
    '''.replace('PUBMASK', 's_cselect_b32 s74, 0x33333333, 0\ns_cselect_b32 s75, 0x33333333, 0\ns_cselect_b32 s68, 0, -1\ns_cselect_b32 s69, 0, -1' if cfg.get('pubsplit') else 's_cselect_b32 s74, 0x33333333, 0\ns_cselect_b32 s75, 0, 0x33333333\ns_cselect_b32 s68, -1, 0\ns_cselect_b32 s69, 0, -1').format(idx=vIdx, a8=vA8, sc=LDS_SC, oa=vOA, sr=vSR, sr1=vSR1, sc1=LDS_SC + 1088, pm0=vPerm, pm1=vPerm + 1, pstr=PSTR, ra=vRA, rb=vRB,
               xs=WS_HOPX, hopb=sHopB, HOPB=WS_HOPB, HOPA=WS_HOPA, part=sPart, pe=sPartE, red=sRed, l0=sLine, l1=sLine + 1, l2=sLine + 2,
               l3=sLine + 3, o1=8 * PSTR, o2=16 * PSTR, o3=24 * PSTR, piece=sPiece, mask=sMask, k=sKoff, KV=WS_KV, v=sVoff, vm=sVM, km=sKM,
               KM=WS_KM, rw=sRemW, rr=sRemR, REM=WS_REM, step=sStep, PAR=(cfg.get('twpar', 0) & 1) << 13))
    cfg['wait_go'](p)
    p('''
    s_and_b32 s81, s81, 0x2000
    s_add_u32 s{rw}, s{rw}, s81
    s_add_u32 s{rr}, s{rr}, s81
    v_min_u32 v24, -2, v24
    s_cmp_eq_u32 s{red}, 0
    s_cbranch_scc1 L_c_nom0
    s_add_u32 s40, s{piece}, {s3}
    s_mov_b64 exec, s[70:71]
    buffer_store_dwordx2 v[24:25], v{rb}, s[4:7], s{rw} offen sc1
    buffer_store_dwordx2 v[24:25], v{rb}, s[4:7], s40 offen
    s_mov_b64 exec, -1
    L_c_nom0:
    s_add_u32 s{rw}, s{rw}, 0x8000
    s_mul_i32 s40, s14, {xs}
    s_add_u32 s{h}, s40, {hint}
    s_lshl_b32 s40, s13, 2
    s_add_u32 s{hw}, s{h}, s40
    s_lshl_b32 s37, s12, 10
    s_add_u32 s37, s37, 4096
    s_mov_b32 s65, m0
    s_cmp_eq_u32 s12, 3
    s_cselect_b32 s60, -1, 0
    s_mov_b32 s81, s64
    s_mov_b32 s64, {dummy}
    s_mov_b32 s34, {scv}
    s_mov_b32 s35, {scv}
    '''.format(rw=sRemW, rr=sRemR, red=sRed, piece=sPiece, s3=3 * 8192, rb=vRB, xs=WS_HOPX, h=sHint, hw=sHintW, hint=WS_HINT2, dummy=WS_DUMMY,
               scv=f2hex(1.4426950408889634 * 128 ** -0.5)))
    flagl = 's_mov_b64 exec, 3\nbuffer_load_dword v%d, v%d, s[4:7], s%d offen sc1\ns_mov_b64 exec, -1' % (vJunk, vL16, sFlagA)
    flagc = 'v_cmp_ge_u32 s[%d:%d], s%d, v%d' % (sNot, sNot + 1, sNeed, vJunk)

    def flag_lines(delta):
        return ['s_add_u32 s40, s%d, %d' % (sStep, delta), 's_lshr_b32 s%d, s40, 2' % sNeed, 's_and_b32 s40, s40, 3',
                's_lshl_b32 s40, s40, 6', 's_add_u32 s%d, s%d, s40' % (sFlagA, sFlagKV)]

    def flag_for(delta):
        for l in flag_lines(delta): p(l)

    def flag_spin(name):
        p(name + ':')
        p(flagl)
        p('s_sub_u32 s{bud}, s{bud}, 1\ns_cbranch_scc1 L_end\ns_waitcnt vmcnt(0)'.format(bud=sBudget))
        p(flagc)
        p('s_and_b32 s40, s%d, 3\ns_cbranch_scc1 %s' % (sNot, name))
    if flags:
        p('s_lshr_b32 s40, s13, 1\ns_lshl_b32 s40, s40, 8\ns_add_u32 s%d, s40, %d' % (sFlagKV, WS_FQKV))
        flag_for(0); flag_spin('L_c_kv0'); flag_for(1); p(flagl)
    kl = ['buffer_load_dwordx4 %s, v%d, s[4:7], s%d offen offset:%d sc1' % (vr(AK + 4 * t, 4), vL16, sKoff, t * 1024) for t in (0, 1)]
    vl = ['buffer_load_dwordx4 %s, v%d, s[4:7], s%d offen offset:%d sc1' % (vr(AV + 4 * t, 4), vL16, sVoff, 2048 + t * 1024) for t in (0, 1)]
    for l in kl: p(l)
    p('s_add_u32 s%d, s%d, 0x80000' % (sKoff, sKoff))
    if stamp:
        for i in range(12): p('s_mov_b32 s%d, 0' % (16 + i))
    p('s_waitcnt lgkmcnt(0)\ns_barrier')

    acc = {('q', 0): ACC, ('k', 0): ACC + 4, ('q', 1): ACC + 8, ('k', 1): ACC + 12, ('v', 0): VACC, ('v', 1): VACC + 4}

    def smf(d, a, w): return 'v_smfmac_f32_16x16x64_bf16 %s, %s, %s, v%d' % (vr(d, 4), vr(a, 4), breg(w), vIdx)
    def smfb(f): return smf(acc[(f[0], f[2])], AA + 4 * BUF[f[1]], where[f])

    lbi = [i for i in range(50) if where[border[i]][0] == 'l']

    def prefill():
        for i in lbi[:2]:
            for l in ld_stage(where[border[i]]): p(l)
        p('''
        s_add_u32 s41, s{step}, 3
        s_and_b32 s41, s41, 3
        s_lshl_b32 s41, s41, 13
        s_add_u32 s{cons}, s41, s{hopb}
        s_add_u32 s{res}, s41, s{piece}
        s_xor_b32 s41, s41, 0x4000
        s_add_u32 s{arm}, s41, s{piece}
        '''.format(step=sStep, cons=sCons, hopb=sHopB, res=sRes, piece=sPiece, arm=sArm))
    EV(p, cfg, 15, 26)
    prefill()
    p('L_c_loop:')
    if stamp:
        p('s_cmp_lg_u32 s%d, 2\ns_cbranch_scc1 L_c_st1' % sStep)
        for i in range(8, 12): p('s_mov_b32 s%d, 0' % (16 + i))
        p('L_c_st1:')
    if cfg.get('tmeas'):
        p('s_cmp_lg_u32 s%d, 3\ns_cbranch_scc1 L_c_tm1\ns_memtime s[28:29]\ns_memrealtime s[78:79]\ns_waitcnt lgkmcnt(0)\nL_c_tm1:' % sStep)
        p('s_cmp_lg_u32 s%d, 63\ns_cbranch_scc1 L_c_tm2\ns_memtime s[30:31]\ns_memrealtime s[40:41]\ns_waitcnt lgkmcnt(0)\ns_sub_u32 s78, s40, s78\nL_c_tm2:' % sStep)
    fill = ['s_and_b32 s40, s%d, 1' % sStep, 's_lshl_b32 s%d, s40, 16' % sTagAdd, 's_xor_b32 s%d, s%d, 0x10000' % (sTag, sTagAdd),
            's_add_u32 s%d, s%d, 1' % (sStep1, sStep)]
    fill += ['v_xor_b32 v%d, %d, v%d' % (r, 1024 * (k + 1), vAw) for k, r in enumerate((vR1, vR2, vR3))]
    fill += ['v_mov_b64 %s, 0' % vr(r, 2) for r in list(range(ACC, ACC + 16, 2)) + list(range(VACC, VACC + 8, 2))]
    dB = cfg.get('dB', 30 if cfg.get('tmeas') else 42)
    for l in fill[:dB]: p(l)
    p(nops(dB - len(fill)))
    if trace:
        r = TP[len(tnames)]; tnames.append('rt'); p('.long 0x%08x\n.long 0' % (0xc0940000 | (r << 6)))
    T('pollB')
    CK = AA + 12
    early = 'buffer_load_dwordx4 %s, v%d, s[4:7], s%d offen sc1' % (vr(AA, 4), vAw, sCons)
    exl = 'buffer_load_dwordx4 %s, v%d, s[4:7], s%d offen offset:2048 sc1' % (vr(XX, 4), vAw, sCons)
    rem = 's_mov_b32 m0, s37\nbuffer_load_dwordx4 v%d, s[4:7], s%d offen sc1 lds' % (vAw, sRemR)
    exr = 's_movk_i32 m0, 0x2000\nbuffer_load_dwordx4 v%d, s[4:7], s%d offen offset:1024 sc1 lds' % (vAw, sRemR)
    exw = 'ds_write_b128 v%d, %s offset:6144' % (vAw, vr(XX, 4))
    remr = ['ds_read_b128 %s, v%d offset:4096' % (vr(AA + 16, 4), vAw), 'ds_read_b128 %s, v%d offset:9216' % (vr(XX, 4), vL16)]

    def chk(r): return ['v_max_u32 v%d, v%d, v%d' % (CK, r, r + 2), 'v_cmp_eq_u32 vcc, -1, v%d' % CK]
    RAW = lambda l: l + ' ; raw'
    p('s_cmp_lg_u32 s12, 2\ns_cbranch_scc1 L_c_nx1')
    p(exl)
    p('L_c_nx1:')
    p(early)
    for l in fill[dB:]: p(l)
    remq = ['s_cmp_lg_u32 s12, 3', 's_cbranch_scc1 L_c_nx3'] + exr.split('\n') + ['L_c_nx3:'] + rem.split('\n')
    reg = cfg.get('reg', 0)
    nr = 0
    if reg:
        p('s_add_u32 s40, s%d, s2' % sRemR)
        p(nops(cfg.get('dP', 8)))
        p('s_mov_b64 exec, 1\nbuffer_load_dword v%d, v%d, s[4:7], s40 offen sc1\ns_mov_b64 exec, -1' % (AV, vL16))
        nr = 1
    if cfg.get('dR') is not None:
        p(nops(cfg['dR']))
        for l in remq: p(l)
        nr += 1
    p('s_waitcnt lgkmcnt(0)')
    p('s_cmp_lg_u32 s12, 2\ns_cbranch_scc1 L_c_nx2\ns_waitcnt vmcnt(%d)' % (1 + nr))
    for l in chk(XX): p(RAW(l))
    p('s_cbranch_vccnz L_c_exlretry\nL_c_exlok:')
    p(RAW(exw))
    p('L_c_nx2:')
    if cfg.get('dR') is not None:
        p('s_cmp_eq_u32 s12, 3\ns_cbranch_scc1 L_c_w3a\ns_waitcnt vmcnt(%d)\nL_c_w3a:\ns_waitcnt vmcnt(%d)' % (nr, nr + 1))
    else: p('s_waitcnt vmcnt(%d)' % nr)
    p('L_c_pollB:')
    CNT(8)
    p(RAW('ds_write_b128 v%d, %s' % (vAw, vr(AA, 4))))
    for l in chk(AA): p(RAW(l))
    p('s_cbranch_vccnz L_c_Bretry')
    T('e0')

    NB = 50
    gaps = {i: [] for i in range(NB)}

    def rdA(s):
        if s in (4, 9): return 'ds_read_b128 %s, v%d offset:%d' % (vr(AA + 4 * BUF[s], 4), vL16, 8192 if s == 4 else 9216)
        return 'ds_read_b128 %s, v%d offset:%d' % (vr(AA + 4 * BUF[s], 4), (vR1, vR2, vR3)[s % 5 - 1], 4096 if s > 4 else 0)
    g1 = cfg.get('gbar1', 2)
    gaps[g1] += ['s_waitcnt lgkmcnt(0)', 's_barrier', rdA(4), rdA(1), rdA(2)]
    gaps[5] += [RAW(rdA(3))]
    if cfg.get('dR') is None: gaps[cfg.get('gRi', GRI)] += remq
    gR = cfg.get('gR', GR)
    gb = gR + cfg.get('gbar', GBAR)
    assert 11 <= gb <= 29
    C2 = CK if cfg.get('gvm', 12) else AV + 1
    assert not cfg.get('gvm', 12) or gb - 4 >= 12
    c = ['v_max_u32 v%d, v%d, v%d' % (C2, XX, XX + 2), 'v_and_b32 v%d, s60, v%d' % (C2, C2),
         'v_max3_u32 v%d, v%d, v%d, v%d' % (C2, C2, AA + 16, AA + 18), 'v_cmp_eq_u32 vcc, -1, v%d' % C2]
    gaps[gR] += ['s_waitcnt vmcnt(0)'] + remr
    if reg:
        gaps[gR] += ['v_readfirstlane_b32 s41, v%d' % AV]
        gaps[gR + 2] += ['s_cmp_eq_u32 s41, -1', 's_cbranch_scc1 L_c_slow', 'L_c_slowok:']
    gaps[gb - 4] += [c[0], c[1]]
    gaps[gb - 3] += [c[2]]
    gaps[gb - 2] += [c[3]]
    gaps[gb] += ['s_cbranch_vccnz L_c_remretry', 'L_c_remok:', 's_barrier', rdA(9)]
    gaps[gb + 2] += ['s_mov_b32 m0, s65']
    gaps[max(gb + 1, 17)] += [rdA(6)]
    gaps[max(gb + 2, 23)] += [rdA(7)]
    gaps[max(gb + 3, 29)] += [rdA(8)]
    A = ACC
    gaps[42] += ['v_add_f32 v%d, v%d, v%d' % (A, A, A + 1)]
    gaps[43] += ['v_add_f32 v%d, v%d, v%d' % (A + 2, A + 2, A + 3)]
    gaps[44] += ['v_cvt_pk_bf16_f32 v%d, v%d, v%d' % (A + 1, A, A + 2)]
    gaps[45] += ['v_add_f32 v%d, v%d, v%d' % (A + 4, A + 4, A + 5)]
    gaps[46] += ['v_add_f32 v%d, v%d, v%d' % (A + 6, A + 6, A + 7)]
    gaps[47] += ['v_cvt_pk_bf16_f32 v%d, v%d, v%d' % (A, A + 4, A + 6)]
    gaps[48] += ['v_add_f32 v%d, v%d, v%d' % (A + 8, A + 8, A + 9)]
    gaps[49] += ['v_add_f32 v%d, v%d, v%d' % (A + 10, A + 10, A + 11)]
    gk = max(gb + 4, 33)
    gaps[gk] += ['v_lshrrev_b32 v%d, 1, v%d' % (vR3, vL16)]
    gaps[gk + 1] += ['v_and_b32 v%d, 0x1e0, v%d' % (vR3, vR3)]
    gaps[gk + 2] += ['v_and_or_b32 v%d, v%d, 16, v%d' % (vR3, vL16, vR3)]
    gaps[gk + 3] += ['v_xor_b32 v%d, 512, v%d' % (vR1, vOA)]
    gaps[gk + 4] += ['v_xor_b32 v%d, 1024, v%d' % (vR2, vOA)]
    gaps[gb + 1] += ['s_add_u32 s%d, s%d, 0x8000' % (sRemR, sRemR)]

    busy = lambda l: any(x.startswith('ds_') or x.startswith('buffer_') for x in l)

    def place(G, lines, g0):
        g = g0
        for l in lines:
            while busy(G[g]): g += 1
            k = max([i + 1 for i, x in enumerate(G[g]) if x.endswith(':')] + [0])
            G[g].insert(k, l)
        return g
    HOLD = AV + 2
    vms = 's_mov_b64 exec, s[68:69]\nbuffer_store_dwordx2 %s, v%d, s[4:7], s%d offen sc1\ns_mov_b64 exec, -1' % (vr(HOLD, 2), vA8, sVM)
    g = g0 = [g for g in range(cfg.get('gvm', 12) or gb, 50) if not busy(gaps[g])][0]
    vmsb = vms.split('\n')
    if cfg.get('pubsplit') == 2: vmsb = ['s_cmp_eq_u32 s14, 0', 's_cbranch_scc1 L_c_nvm', vmsb[1] + ' ; nocount', 'L_c_nvm:']
    gaps[g] = vmsb + ['s_mov_b32 s%d, s%d' % (sVM, sVMn)] + gaps[g]
    sp = cfg.get('vsp', 4)
    g1_ = place(gaps, vl[:1], g + sp); g = place(gaps, vl[1:], g1_ + sp); gfl = max(g + sp, gb)
    gaps[gR] = [x.replace('vmcnt(0)', 'vmcnt(%d)' % sum(1 for q in (g0, g1_, g) if q < gR)) for x in gaps[gR]]
    for a, b in zip(lbi, lbi[2:]):
        g = place(gaps, ld_stage(where[border[b]]), max(a, 3)); assert g < b - 2, (g, b)
    for a, f in zip(lbi[-2:], (('v', 9, 0), ('v', 9, 1))): place(gaps, ld_stage(where[f]), a)
    if flags:
        gaps[8] += [RAW(flagc)]
        for g, l in zip(range(9, 14), flag_lines(2)): gaps[g] += [l]
        g = [g for g in range(gfl, 50) if not busy(gaps[g])][0]
        gaps[g] = flagl.split('\n') + gaps[g]
    for g in gaps:
        if not any('exec' in x or 'barrier' in x or 'branch' in x or x.endswith(':') for x in gaps[g]):
            gaps[g].sort(key=lambda x: 0 if x.startswith('s_') else (2 if x.startswith('v_') else 1))
    for i, f in enumerate(border):
        p(RAW(smfb(f)) if i < 6 else smfb(f))
        if i in (6, gR, 30, 38): T('m%d' % i)
        for l in gaps[i]: p(l)
    T('bend')
    vq = list(vorder)
    xpre = ld_stage(where[('o', 2, 0)]) + ld_stage(where[('o', 2, 1)])

    def V(*extra):
        p(smfb(vq.pop(0)))
        for l in extra: p(l)
    Z = lambda r: 'v_mov_b64 %s, 0' % vr(r, 2)
    p('''
    v_mfma_f32_16x16x16_bf16 v[{a4}:{a7}], v[{a0}:{a1}], v[{pm}:{pm1}], 0
    v_cvt_pk_bf16_f32 v{a9}, v{a8}, v{a10}
    v_add_f32 v{a12}, v{a12}, v{a13}
    v_add_f32 v{a14}, v{a14}, v{a15}
    v_cvt_pk_bf16_f32 v{a8}, v{a12}, v{a14}
    s_mov_b64 vcc, s[72:73]
    v_mfma_f32_16x16x16_bf16 v[{a12}:{a15}], v[{a8}:{a9}], v[{pm}:{pm1}], 0
    '''.format(pm=vPerm, pm1=vPerm + 1, **{'a%d' % i: A + i for i in range(16)}))
    V()
    for i in range(4): p('v_cvt_pk_bf16_f32 v%d, v%d, v%d' % (XX + i, A + 4 + i, A + 12 + i))
    X = vr(XX, 4)
    p('v_mfma_f32_16x16x32_bf16 %s, %s, %s, 0' % (vr(A + 12, 4), X, X))
    p('v_mfma_f32_16x16x32_bf16 %s, %s, %s, 0' % (vr(A + 4, 4), X, vr(AK, 4)))
    p('v_mfma_f32_16x16x32_bf16 %s, %s, %s, 0' % (vr(A + 8, 4), X, vr(AK + 4, 4)))
    p('v_cndmask_b32_dpp v{0}, v{1}, v{0}, vcc quad_perm:[2,3,0,1] row_mask:0xf bank_mask:0xf'.format(A + 14, A + 15))
    V('ds_write_addtid_b32 v%d offset:1088' % (A + 14), 'ds_write_addtid_b32 v%d' % (A + 6), 'ds_write_addtid_b32 v%d offset:272' % (A + 7))
    V('ds_write_addtid_b32 v%d offset:544' % (A + 10), 'ds_write_addtid_b32 v%d offset:816' % (A + 11))
    kms = ['s_mov_b64 exec, s[74:75]', 'buffer_store_dwordx4 %s, v%d, s[4:7], s%d offen sc1' % (X, vR3, sKM), 's_mov_b64 exec, -1']
    V('s_cmp_eq_u32 s%d, 63' % sStep, 'v_min_u32 v%d, -2, v%d' % (XX, XX))
    p('s_cbranch_scc1 L_c_last')
    vlast = list(vq)
    nvb = cfg.get('nvb', 0)
    zq = [Z(AA + 4), Z(AA + 6), Z(AA + 8), Z(AA + 10), Z(AA), Z(AA + 2)]
    for k in range(nvb):
        V(*((['s_and_b32 s40, s%d, 3' % sNot, 's_cbranch_scc1 L_c_kvspin', 'L_c_kvok:'] if flags and k == 0 else [])))
    if flags and not nvb: p('s_and_b32 s40, s%d, 3\ns_cbranch_scc1 L_c_kvspin\nL_c_kvok:' % sNot)
    mq = [[kl[0]], [kl[1]], kms]
    if cfg.get('pubsplit') == 2: mq[2] = ['s_cmp_eq_u32 s14, 1', 's_cbranch_scc1 L_c_nkm', kms[0], kms[1] + ' ; nocount', kms[2], 'L_c_nkm:']
    for _ in range(cfg.get('kearly', 0)): p(mq.pop(0)[0])
    p('s_waitcnt lgkmcnt(0)\ns_barrier')
    T('bar2')
    E = AA + 12
    p('ds_read2st64_b32 %s, v%d offset0:0 offset1:6' % (vr(E, 2), vSR1))
    p('ds_read2st64_b32 %s, v%d offset0:12 offset1:18' % (vr(E + 2, 2), vSR1))
    for w in range(4): p('ds_read_b128 %s, v%d offset:%d' % (vr(A + 4 * w, 4), vSR, w * 1536))
    while vq:
        done = 6 - len(vq)
        ex = mq.pop(0) if mq else []
        if done >= 2 and 6 - len(zq) < 2 * (done // 2): ex = ex + [zq.pop(0)]
        V(*ex)
    for m in mq:
        for l in m: p(l)

    def pk(op, d, a, b): return 'v_pk_%s_f32 %s, %s, %s' % (op, vr(d, 2), vr(a, 2), vr(b, 2))
    while len(zq) > 2: p(zq.pop(0))
    for l in zq: p(l)
    p(pk('add', E, E, E + 2))
    p(pk('add', A, A, A + 4)); p(pk('add', A + 2, A + 2, A + 6))
    p('v_add_f32 v%d, v%d, v%d' % (A + 4, E, E + 1))
    p(pk('add', A, A, A + 8)); p(pk('add', A + 2, A + 2, A + 10))
    p(pk('add', A, A, A + 12)); p(pk('add', A + 2, A + 2, A + 14))
    T('dend')
    M, TM = A + 6, A + 5
    XP = 'quad_perm:[1,0,3,2] row_mask:0xf bank_mask:0xf'
    PB, PM = E, E + 4
    OD = A + 8
    fm = dict(M=M, M1=M + 1, T=TM, xp=XP, sc=sScale, sc1=sScale + 1, pm=PM, pm1=PM + 1, r3=vR3, oa=vOA, vms=vms, h0=HOLD, h1=HOLD + 1,
              x0=xpre[0], x1=xpre[1], x2=xpre[2], x3=xpre[3],
              **{'e%d' % i: A + i for i in range(5)}, **{'p%d' % i: PB + i for i in range(4)},
              **{'w%d' % i: XX + i for i in range(4)}, **{'V%d' % i: AV + i for i in range(8)},
              **{'u%d' % i: VACC + i for i in range(8)}, **{'o%d' % i: OD + i for i in range(8)})
    p('''
    v_max3_f32 v{M}, v{e0}, v{e1}, v{e4}
    v_max3_f32 v{M}, v{M}, v{e2}, v{e3}
    v_add_f32 v{u0}, v{u0}, v{u1}
    v_add_f32 v{u2}, v{u2}, v{u3}
    v_max_f32_dpp v{M}, v{M}, v{M} {xp}
    v_mov_b32 v{T}, v{M}
    v_add_f32 v{u4}, v{u4}, v{u5}
    v_add_f32 v{u6}, v{u6}, v{u7}
    v_permlane16_swap_b32 v{M}, v{T}
    v_max_f32 v{M}, v{M}, v{T}
    v_mov_b32 v{T}, v{M}
    v_cvt_pk_bf16_f32 v{w0}, v{u0}, v{u2}
    v_cvt_pk_bf16_f32 v{w2}, v{u4}, v{u6}
    v_permlane32_swap_b32 v{M}, v{T}
    v_max_f32 v{M}, v{M}, v{T}
    v_mul_f32 v{M}, s{sc}, v{M}
    v_pk_fma_f32 v[{e0}:{e1}], v[{e0}:{e1}], s[{sc}:{sc1}], v[{M}:{M1}] op_sel_hi:[1,1,0] neg_lo:[0,0,1] neg_hi:[0,0,1]
    v_pk_fma_f32 v[{e2}:{e3}], v[{e2}:{e3}], s[{sc}:{sc1}], v[{M}:{M1}] op_sel_hi:[1,1,0] neg_lo:[0,0,1] neg_hi:[0,0,1]
    v_exp_f32 v{e0}, v{e0}
    v_exp_f32 v{e1}, v{e1}
    v_exp_f32 v{e2}, v{e2}
    v_exp_f32 v{e3}, v{e3}
    v_cvt_pk_bf16_f32 v{p0}, v{e0}, v{e1}
    v_cvt_pk_bf16_f32 v{p1}, v{e2}, v{e3}
    v_fma_f32 v{e4}, v{e4}, s{sc}, -v{M}
    v_mov_b32_dpp v{p2}, v{p0} {xp}
    v_mov_b32_dpp v{p3}, v{p1} {xp}
    v_exp_f32 v{e4}, v{e4}
    v_add_f32 v{e0}, v{e0}, v{e1}
    v_mfma_f32_16x16x32_bf16 v[{o0}:{o3}], v[{V0}:{V3}], v[{p0}:{p3}], 0
    {x0}
    v_mov_b32_dpp v{T}, v{e4} {xp}
    v_cvt_pk_bf16_f32 v{pm}, v{e4}, v{T}
    v_mfma_f32_16x16x32_bf16 v[{o4}:{o7}], v[{V4}:{V7}], v[{p0}:{p3}], 0
    {x1}
    v_mov_b32 v{pm1}, 0
    v_add_f32 v{e2}, v{e2}, v{e3}
    v_add_f32 v{e0}, v{e0}, v{e4}
    v_mfma_f32_16x16x16_bf16 v[{o0}:{o3}], v[{w0}:{w1}], v[{pm}:{pm1}], v[{o0}:{o3}]
    {x2}
    v_add_f32 v{e0}, v{e0}, v{e2}
    v_mfma_f32_16x16x16_bf16 v[{o4}:{o7}], v[{w2}:{w3}], v[{pm}:{pm1}], v[{o4}:{o7}]
    {x3}
    v_add_f32_dpp v{e0}, v{e0}, v{e0} {xp}
    v_mov_b32 v{T}, v{e0}
    v_xor_b32 v{r3}, 1536, v{oa}
    v_mov_b32 v{h1}, v{w2}
    v_permlane16_swap_b32 v{e0}, v{T}
    v_add_f32 v{e0}, v{e0}, v{T}
    v_mov_b32 v{T}, v{e0}
    v_min_u32 v{h0}, -2, v{w0}
    s_mov_b64 vcc, s[76:77]
    v_permlane32_swap_b32 v{e0}, v{T}
    v_add_f32 v{e0}, v{e0}, v{T}
    v_rcp_f32 v{e4}, v{e0}
    '''.format(**fm))
    for i in range(4): p('v_cndmask_b32_dpp v%d, v%d, v%d, vcc %s' % (OD + i, OD + 4 + i, OD + i, XP))
    for i in range(2): p('v_pk_mul_f32 %s, %s, %s op_sel_hi:[1,0]' % (vr(OD + 2 * i, 2), vr(OD + 2 * i, 2), vr(A + 4, 2)))
    for i in range(2): p('v_cvt_pk_bf16_f32 v%d, v%d, v%d' % (OA + i, OD + 2 * i, OD + 2 * i + 1))
    p('s_cmp_ge_u32 s12, 2')
    p('ds_write_b64 v%d, %s' % (vA8, vr(OA, 2)))
    T('owr')
    p('s_cbranch_scc1 L_c_h23')
    hacc = {0: HACC, 1: HACC + 4, 2: HACC + 8}
    MK, OWN = AV, AV + 4
    HV, HA, HD = E, E + 1, E + 2
    hintl = 'buffer_load_dword v%d, v%d, s[4:7], s%d offen sc1' % (HV, HA, sHint)
    RO = 'row_ror:8 row_mask:0xf bank_mask:0xf'

    def first(a): return ['v_add_u32 v%d, s%d, v%d' % (a + 1, sTagAdd, a + 1), 'v_and_or_b32 v%d, v%d, v%d, s%d' % (a + 1, a + 1, MK, sTag),
                          'v_cvt_pk_bf16_f32 v%d, v%d, v%d' % (a, a, a + 1), 'v_cvt_pk_bf16_f32 v%d, v%d, v%d' % (a + 2, a + 2, a + 3)]
    thend = TS('hend')
    gp = cfg.get('gprobe', (3, 5, 7))

    def emit_h(kind):
        order = [f for f in horder if kind == 0 or f[1] < 2]
        n = len(order)
        hg = {i: [] for i in range(n)}
        for i in range(4): p('v_mov_b32_dpp v%d, v%d quad_perm:[%s] row_mask:0xf bank_mask:0xf' % (OWN + i, OA + (i & 1), '1,1,3,3' if i >> 1 else '0,0,2,2'))
        if kind == 2:
            p('v_mov_b32 v%d, s%d\nv_bfe_u32 v%d, v%d, 2, 7' % (HD, sStep1, HA, vL16))
            hg[cfg.get('ghint', 0)] += ['s_mov_b64 exec, 1', 'buffer_store_dword v%d, v%d, s[4:7], s%d offen' % (HD, vL16, sHintW), 's_mov_b64 exec, -1']
            for g in gp: hg[g] += [hintl]
        else: p('s_add_u32 s{0}, s{0}, 0x80000\ns_add_u32 s{1}, s{1}, 0x80000'.format(sKoff, sVoff))
        hg[1] += ['s_waitcnt lgkmcnt(0)', 's_barrier'] + ['ds_read_b128 %s, v%d' % (vr(OA + 4 + 4 * k, 4), r) for k, r in enumerate((vR1, vR2, vR3))]
        if kind == 0: hg[1] += ld_stage(where[('o', 2, 2)]); hg[2] += ld_stage(where[('o', 2, 3)])
        hg[1 if kind else 2] += ['v_mov_b32 v%d, 0xfffe0000' % MK, 's_add_u32 s{0}, s{0}, 0x20000'.format(sKM), 's_add_u32 s{0}, s{0}, 0x20000'.format(sVMn)]
        if kind == 2: hg[1] += ['s_add_u32 s{0}, s{0}, 0x80000'.format(sKoff), 's_add_u32 s{0}, s{0}, 0x80000'.format(sVoff)]
        q = hacc[0]
        if kind == 0:
            e = hacc[2]; f = first(e)
            hg[9] += f[:2]; hg[10] += f[2:]
            hg[11] += ['v_mov_b32_dpp v%d, v%d %s' % (e + 1, e, XP), 'v_mov_b32_dpp v%d, v%d %s' % (e + 3, e + 2, XP),
                       's_mov_b64 exec, s[76:77]', 'buffer_store_dwordx4 %s, v%d, s[4:7], s%d offen' % (vr(e, 4), vA8, sPartE), 's_mov_b64 exec, -1']
        hg[n - 1] += first(q) + ['v_cvt_pk_bf16_f32 v%d, v%d, v%d' % (q + 1, q + 4, q + 5), 'v_cvt_pk_bf16_f32 v%d, v%d, v%d' % (q + 3, q + 6, q + 7),
                                 'buffer_store_dwordx4 %s, v%d, s[4:7], s%d offen' % (vr(q, 4), vAw, sPart)]
        for i, f in enumerate(order):
            p(smf(hacc[f[1]], OWN if f[2] == 0 else OA + 4 * f[2], where[f]))
            for l in hg[i]: p(l)
        for l in thend: p(l)
        p('s_mov_b32 s%d, s%d' % (sStep, sStep1))
    SEL, RD, TT, LA = AV + 4, VACC, XX, ACC
    emit_h(0)
    p('''
    v_and_b32 v{t0}, 16, v{l16}
    v_lshlrev_b32_e64 v{t0}, v{t0}, s{one}
    v_bfe_u32 v{t1}, v{l16}, 5, 3
    v_cmp_eq_u32 vcc, 0, v{t1}
    v_cmp_eq_u32 s[38:39], 1, v{t1}
    v_cmp_eq_u32 s[40:41], 2, v{t1}
    v_cndmask_b32 v{s0}, 0, v{t0}, vcc
    v_cmp_eq_u32 vcc, 3, v{t1}
    v_cndmask_b32 v{s1}, 0, v{t0}, s[38:39]
    v_cndmask_b32 v{s2}, 0, v{t0}, s[40:41]
    v_cndmask_b32 v{s3}, 0, v{t0}, vcc
    v_mov_b64 v[{n0}:{n1}], -1
    '''.format(t0=TT, t1=TT + 1, l16=vL16, one=sOne, s0=SEL, s1=SEL + 1, s2=SEL + 2, s3=SEL + 3, n0=TT + 2, n1=TT + 3))
    hint = cfg.get('hint', 0)
    if hint: p('s_barrier')
    T('bar4')

    def roundA(la=LA):
        for q in range(4): p('buffer_load_dwordx4 %s, v%d, s[4:7], s%d offen sc1' % (vr(la + 4 * q, 4), vRA, sLine + q))

    def redA(la):
        p('''
        v_mfma_f32_16x16x32_bf16 {rd}, {sel}, {l0}, 0
        v_mfma_f32_16x16x32_bf16 {rd}, {sel}, {l1}, {rd}
        v_bitop3_b32 v{t0}, v{x0}, v{x1}, s{tag} bitop3:0x7e
        v_mfma_f32_16x16x32_bf16 {rd}, {sel}, {l2}, {rd}
        v_mfma_f32_16x16x32_bf16 {rd}, {sel}, {l3}, {rd}
        v_bitop3_b32 v{t1}, v{x2}, v{x3}, s{tag} bitop3:0x7e
        v_bitop3_b32 v{t0}, v{t0}, v{t1}, s{mask} bitop3:0xa8
        v_cmp_ne_u32 vcc, 0, v{t0}
        '''.format(rd=vr(RD, 4), sel=vr(SEL, 4), l0=vr(la, 4), l1=vr(la + 4, 4), l2=vr(la + 8, 4), l3=vr(la + 12, 4),
                   t0=TT, t1=TT + 1, x0=la, x1=la + 4, x2=la + 8, x3=la + 12, tag=sTag, mask=sMask))
        for i in range(4): p('v_add_f32_dpp v%d, v%d, v%d %s' % (RD + i, RD + i, RD + i, RO))
        p('''
        v_cvt_pk_bf16_f32 v{r0}, v{r0}, v{r1}
        v_cvt_pk_bf16_f32 v{r1}, v{r2}, v{r3}
        v_min_u32 v{r0}, -2, v{r0}
        '''.format(r0=RD, r1=RD + 1, r2=RD + 2, r3=RD + 3))
    arm = 's_mov_b64 exec, s[70:71]\nbuffer_store_dwordx2 %s, v%d, s[4:7], s%d offen\ns_mov_b64 exec, -1' % (vr(TT + 2, 2), vRB, sArm)
    p('s_cmp_eq_u32 s%d, 0\ns_cbranch_scc1 L_c_idle' % sRed)
    d0, d1, d2 = cfg.get('dA0', 24 if hint else 50), cfg.get('dA1', 8 if hint else 20), cfg.get('dA2', 24)
    p('s_cmp_eq_u32 s12, 1\ns_cbranch_scc1 L_c_pa1'); p(nops(d0 - d1)); p('L_c_pa1:'); p(nops(d1))
    T('pollA')
    roundA(); prefill()
    if d2 is not None: p(nops(d2)); roundA(AA)
    p(arm)
    redA(LA)
    T('Aret')
    st_r = 'buffer_store_dwordx2 %s, v%d, s[4:7], s%d offen sc1' % (vr(RD, 2), vRB, sRemW)
    st_l = 'buffer_store_dwordx2 %s, v%d, s[4:7], s%d offen' % (vr(RD, 2), vRB, sRes)
    p('''
    s_cbranch_vccnz L_c_A2
    L_c_okA:
    s_mov_b64 exec, s[70:71]
    {a}
    {b}
    s_mov_b64 exec, -1
    s_add_u32 s{rw}, s{rw}, 0x8000
    L_c_nored:
    '''.format(r0=RD, r1=RD + 1, r2=RD + 2, r3=RD + 3, rw=sRemW, a=st_r if cfg.get('remfirst') else st_l, b=st_l if cfg.get('remfirst') else st_r))
    T('red')
    p('s_barrier')
    if trace:
        p('s_cmp_lg_u32 s%d, %d\ns_cbranch_scc1 L_c_loop\ns_waitcnt lgkmcnt(0)' % (sStep, trace))
        for i, r in enumerate(TP[:len(tnames)]): p('v_writelane_b32 v%d, s%d, %d' % (vR2, r, i))
        p('s_lshl_b32 s40, s14, 5\ns_add_u32 s40, s40, s13\ns_lshl_b32 s40, s40, 2\ns_add_u32 s40, s40, s12\ns_lshl_b32 s40, s40, 7\ns_add_u32 s40, s40, %d' % WS_STAMP)
        p('v_lshrrev_b32 v%d, 2, v%d\ns_mov_b64 exec, 0xfffff\nbuffer_store_dword v%d, v%d, s[4:7], s40 offen\ns_mov_b64 exec, -1' % (vR1, vL16, vR2, vR1))
    p('s_branch L_c_loop')
    bud = 's_sub_u32 s{bud}, s{bud}, 1\ns_cbranch_scc1 L_end'.format(bud=sBudget)
    p('L_c_A2:')
    if d2 is not None:
        CNT(9, 1000)
        p('s_waitcnt vmcnt(1)'); redA(AA); p('s_cbranch_vccz L_c_okA')
    p('L_c_pollA:')
    CNT(9)
    roundA(); p(bud); redA(LA); p('s_cbranch_vccnz L_c_pollA\ns_branch L_c_okA')
    p('L_c_h23:')
    if hint: p('s_cmp_eq_u32 s12, 3\ns_cbranch_scc1 L_c_watch')
    emit_h(1)
    p('s_branch L_c_hintok' if hint else 's_branch L_c_idle0')
    p('L_c_watch:')
    emit_h(2)
    p(hintl)
    for k, g in enumerate(gp):
        p('s_waitcnt vmcnt(%d)' % (len(gp) + 1))
        p(RAW('v_cmp_ne_u32 vcc, s%d, v%d' % (sStep, HV)))
        p('s_cbranch_vccz L_c_hintok')
        CNT(9)
        p(hintl)
    p('L_c_hint:')
    p(bud)
    p('s_waitcnt vmcnt(%d)' % len(gp))
    p(RAW('v_cmp_ne_u32 vcc, s%d, v%d' % (sStep, HV)))
    p('s_cbranch_vccz L_c_hintok')
    CNT(9)
    p(hintl)
    p('s_branch L_c_hint')
    p('L_c_hintok:')
    p('s_barrier')
    p('L_c_idle0:')
    if cfg.get('ev') == 1: EV(p, cfg, 15, ACC, dyn='s%d' % sStep)
    p('L_c_idle:')
    prefill()
    p('s_branch L_c_nored')
    p('L_c_remretry:')
    CNT(10)
    p('s_cmp_lg_u32 s12, 3\ns_cbranch_scc1 L_c_rr1')
    p(exr)
    p('L_c_rr1:')
    p(rem); p(bud); p('s_waitcnt vmcnt(0)')
    for l in remr + c: p(l)
    p('s_cbranch_vccnz L_c_remretry\ns_branch L_c_remok')
    if reg:
        p('L_c_slow:')
        CNT(11, 1000)
        p('s_sleep %d\ns_branch L_c_slowok' % cfg.get('corr', 1))
    p('L_c_exlretry:')
    CNT(11)
    p(exl); p(bud); p('s_waitcnt vmcnt(0)')
    for l in chk(XX): p(l)
    p('s_cbranch_vccnz L_c_exlretry\ns_branch L_c_exlok')
    if flags:
        p('L_c_kvspin:'); flag_for(1); flag_spin('L_c_kvspin2'); flag_for(2); p(flagl); p('s_branch L_c_kvok')
    p('L_c_Bretry:')
    p(early); p(bud); p('s_waitcnt vmcnt(0)\ns_branch L_c_pollB')
    p('L_c_last:')
    for l in kms: p(l)
    for f in vlast: p(smfb(f))
    p('''
    v_add_f32 v{u0}, v{u0}, v{u1}
    v_add_f32 v{u2}, v{u2}, v{u3}
    v_add_f32 v{u4}, v{u4}, v{u5}
    v_add_f32 v{u6}, v{u6}, v{u7}
    s_waitcnt vmcnt(1)
    v_cvt_pk_bf16_f32 v{h0}, v{u0}, v{u2}
    v_cvt_pk_bf16_f32 v{h1}, v{u4}, v{u6}
    v_min_u32 v{h0}, -2, v{h0}
    {vms}
    s_waitcnt vmcnt(0) lgkmcnt(0)
    '''.format(**fm))
    if stamp:
        for i in range(12): p('v_mov_b32 v%d, s%d' % (16 + i, 16 + i))
        p('v_mov_b32 v23, s15')
        p('s_lshl_b32 s40, s14, 5\ns_add_u32 s40, s40, s13\ns_lshl_b32 s40, s40, 2\ns_add_u32 s40, s40, s12\ns_lshl_b32 s40, s40, 6\ns_add_u32 s40, s40, %d' % WS_STAMP)
        p('s_mov_b64 exec, 1')
        for i in range(3): p('buffer_store_dwordx4 v[%d:%d], v0, s[4:7], s40 offen offset:%d' % (16 + 4 * i, 19 + 4 * i, 16 * i))
        p('s_mov_b64 exec, -1')
    p('s_branch L_end')
```

```python
import struct
def f2hex(x): return '0x%08x' % struct.unpack('<I', struct.pack('<f', x))[0]
HOPA_STRIDE = 10240 + 128
WS_FQKV    = 0x0000000
WS_FH      = 0x0001000
WS_FU      = 0x0002000
WS_MOD     = 0x0004000
CTRL_END   = 0x0006000
WS_HOPA    = 0x0010000
WS_HINT    = 0x006f000
WS_HOPB    = 0x0070000
WS_HOPX    = 0x0080000
WS_DUMMY   = 0x0190000
WS_HINT2   = 0x004f000
WS_REM     = 0x0200000
WS_STAMP   = 0x01a0000
WS_H       = 0x0400000
WS_KM      = 0x0800000
WS_VM      = 0x0c00000
WS_Q       = 0x1000000
WS_KV      = 0x2000000
WS_POST    = 0x4100000
WS_SIZE    = 0x10000000


def EV(p, cfg, idx, va=2, sa=94, dyn=None, clk=False):
    if cfg.get('enc') and cfg['enc'][1] == idx and not clk and dyn is None: p('s_memrealtime s[100:101]\ns_waitcnt lgkmcnt(0)')
    if not cfg.get('ev'): return
    p('''
    {op} s[{sa}:{sb}]
    s_waitcnt lgkmcnt(0)
    v_mov_b32 v{va}, s{sa}
    s_lshl_b32 s{sa}, s14, 5
    s_add_u32 s{sa}, s{sa}, s13
    s_lshl_b32 s{sa}, s{sa}, 7
    s_add_u32 s{sa}, s{sa}, {dyn}
    s_lshl_b32 s{sa}, s{sa}, 2
    s_add_u32 s{sa}, s{sa}, {base}
    v_mov_b32 v{vb}, 0
    s_mov_b64 exec, 1
    buffer_store_dword v{va}, v{vb}, s[4:7], s{sa} offen ; nocount
    s_mov_b64 exec, -1
    '''.format(sa=sa, sb=sa + 1, va=va, vb=va + 1, base=WS_STAMP + 4 * idx, dyn=dyn or 0, op='s_memtime' if clk else 's_memrealtime'))
```

```python
from layout import *
from worker import *

ROWS = 32 * 1280 + 256
PART_B, H2 = 0x180000, 0x300000
L_H2, L_WD, L_O, L_ACT, L_RED = 0, 40960, 122880, 131072, 135168
sSeg, sIt, sPA, sPB, sH2, sFl, sQ, sKV, sKM, sVM, sScale, sRowA, sRowB, sXo, sV = 61, 62, 63, 64, 65, 66, 67, 68, 69, 70, 71, 72, 73, 74, 75
mMask = 76
vKM, vOW, vSt4, vSt1, vRA, vRB, vRW, vL4, vH2, vAW, vWD = 4, 5, 6, 7, 8, 9, 10, 11, 12, 13, 14
SEL = 16
DS = 24
MODV = 24
X1 = 44
XR = 54
vL8 = 190
vC5 = 15
col = lambda k: (vL4, 320 * k) if k < 4 else (vC5, 256)
L_MOD = 145408
IN = 60
WK = 124


def gen_post(p, cfg):
    st = ' sc1' if cfg.get('slow') else ''
    L = lambda s: s + cfg.get('sfx', '')
    pn = cfg.setdefault('pnames', [])

    def PT(name):
        if not cfg.get('ptrace'): return
        p('s_memtime s[94:95]\ns_waitcnt lgkmcnt(0)\nv_writelane_b32 v59, s94, %d' % len(pn)); pn.append(name)
    p('''
    v_and_b32 v16, 15, v{l}             ; c
    v_lshrrev_b32 v17, 4, v{l}          ; g
    s_mul_i32 s{t}, s12, 320
    ; Wo rows 8g: v2 (x4 part), v3 (x1 part)
    v_lshrrev_b32 v18, 1, v17
    v_and_b32 v19, 1, v17
    v_lshl_add_u32 v18, v18, 2, v19
    v_mul_u32_u24 v18, 5120, v18
    s_mul_i32 s{t2}, s13, 163840
    s_add_u32 s{t2}, s{t2}, s{t}
    v_add_u32 v18, s{t2}, v18
    v_lshl_add_u32 v2, v16, 4, v18
    v_lshl_add_u32 v3, v16, 2, v18
    ; W_down rows 64 rank + 16 g: v4, v5
    v_mul_u32_u24 v18, 20480, v17
    s_mul_i32 s{t2}, s13, 81920
    s_add_u32 s{t2}, s{t2}, s{t}
    v_add_u32 v18, s{t2}, v18
    v_lshl_add_u32 v4, v16, 4, v18
    v_lshl_add_u32 v5, v16, 2, v18
    ; gate / up rows 8g, column 64 rank + 4c + (w&2): v6
    v_mul_u32_u24 v18, 27648, v17
    s_lshl_b32 s{t2}, s13, 7
    v_add_u32 v18, s{t2}, v18
    v_lshl_add_u32 v6, v16, 3, v18
    s_mul_i32 s{t}, s12, 20480
    s_add_u32 s{t}, s{t}, {lwd}
    v_add_u32 v{wd}, s{t}, v{l16}
    '''.format(l=vL, t=sT, t2=sT2, s0=sSel0, s1=sSel1, lwd=L_WD, wd=vWD, l16=vL16))
    RB = 32

    def rows(u):
        if u[0] == 'o': return [32 * u[1] + 8 * (i4 >> 1) + 2 * (i4 & 1) + z for i4 in range(4) for z in (0, 1)]
        return [2 * u[1] + (i4 >> 1) + 8 * (i4 & 1) + 4 * z for i4 in range(4) for z in (0, 1)]

    def issue_od(u, slot):
        b = RB + 40 * slot
        sr, va = (sWo, 2) if u[0] == 'o' else (sWd, 4)
        for j, r in enumerate(rows(u)):
            p('s_mov_b32 s%d, %d' % (sT, r * 1280))
            p('buffer_load_dwordx4 %s, v%d, %s, s%d offen' % (vr(b + 4 * j, 4), va, srd(sr), sT))
            p('buffer_load_dword v%d, v%d, %s, s%d offen offset:256' % (b + 32 + j, va + 1, srd(sr), sT))

    def finish_od(u, slot):
        b = RB + 40 * slot
        for t in range(10):
            for i4 in range(4):
                lo = b + 8 * i4 + (t >> 1) if t < 8 else b + 32 + 2 * i4
                hi = lo + 4 if t < 8 else lo + 1
                if u[0] == 'o': put(p, 16 * t + 4 * u[1] + i4, hi, lo, sSel0 + (t & 1), 16 + i4)
                else: p('v_perm_b32 v%d, v%d, v%d, s%d' % (16 + 4 * (t & 1) + i4, hi, lo, sSel0 + (t & 1)))
            if u[0] == 'd':
                p('ds_write_b128 v%d, %s offset:%d' % (vWD, vr(16 + 4 * (t & 1), 4), (2 * t + u[1]) * 1024))
                if t & 1: p('s_waitcnt lgkmcnt(0)')
    pipeline([('o', k) for k in range(4)], 3, issue_od, finish_od)
    p('s_cmp_ge_u32 s13, 27\ns_cbranch_scc1 ' + L('L_p_now'))
    pipeline([('d', k) for k in range(2)], 3, issue_od, finish_od)

    p('''
    s_mul_i32 s{t}, s12, {rows5}
    v_add_u32 v9, s{t}, v6
    s_mul_i32 s{t}, s12, {rows}
    v_add_u32 v6, s{t}, v6
    s_lshl_b32 s{t}, s12, 11
    v_add_u32 v7, s{t}, v{l16}          ; write: tile*8192 + wave*2048 + m*1024
    s_lshl_b32 s{t}, s12, 13
    v_add_u32 v8, s{t}, v{l16}          ; read
    '''.format(t=sT, rows=32 * 3456, rows5=160 * 3456, l16=vL16))

    def issue_g(r, slot):
        b = RB + 32 * slot
        for i4 in range(4):
            p('s_mov_b32 s%d, %d' % (sT, ((160 * r if r < 4 else 128) + 2 * i4) * 3456))
            for m, sr in enumerate((sWg, sWu)):
                p('buffer_load_dwordx2 %s, v%d, %s, s%d offen' % (vr(b + 16 * m + 4 * i4, 2), 6 if r < 4 else 9, srd(sr), sT))
                p('buffer_load_dwordx2 %s, v%d, %s, s%d offen offset:3456' % (vr(b + 16 * m + 4 * i4 + 2, 2), 6 if r < 4 else 9, srd(sr), sT))

    def finish_g(r, slot):
        b = RB + 32 * slot
        for m in (0, 1):
            for t in range(4):
                for i4 in range(4):
                    lo = b + 16 * m + 4 * i4 + (t >> 1)
                    p('v_perm_b32 v%d, v%d, v%d, s%d' % (16 + 4 * t + i4, lo + 2, lo, sSel0 + (t & 1)))
            if m == 0: p('s_barrier')
            for t in range(4): p('ds_write_b128 v7, %s offset:%d' % (vr(16 + 4 * t, 4), t * 8192 + m * 1024))
            p('s_waitcnt lgkmcnt(0)')
        p('s_barrier')
        for w in range(4):
            for m in (0, 1): p('ds_read_b128 %s, v8 offset:%d' % (wreg(160 + 8 * (4 * r + w) + 4 * m), w * 2048 + m * 1024))
        p('s_waitcnt lgkmcnt(0)')
    pipeline(list(range(5)), 4, issue_g, finish_g)
    p(L('L_p_now') + ':')
    EV(p, cfg, 10)
    p('''
    s_waitcnt vmcnt(0) lgkmcnt(0)
    v_and_b32 v60, 15, v{l}             ; c
    v_lshrrev_b32 v61, 4, v{l}          ; g
    v_lshlrev_b32 v{l4}, 2, v{l}
    ; k_mem gather: 128 g + 32 (c>>2) + 16 (c&1)
    v_lshrrev_b32 v62, 1, v{l16}
    v_and_b32 v62, 0x1e0, v62
    v_and_or_b32 v{km}, v{l16}, 16, v62
    ; o write: L_O + qt*4096 + (2 eh + (g>>1))*1024 + (g&1)*512 + 16 c
    s_and_b32 s{t}, s12, 1
    s_lshl_b32 s{t}, s{t}, 12
    s_lshr_b32 s{t2}, s12, 1
    s_lshl_b32 s{t2}, s{t2}, 8
    s_add_u32 s{t}, s{t}, s{t2}
    s_add_u32 s{t}, s{t}, {lo}
    v_lshlrev_b32 v62, 10, v61
    v_lshl_add_u32 v62, v60, 4, v62
    v_add_u32 v{ow}, s{t}, v62
    ; partial stores: row 4g, this head, columns of this wave
    s_mul_i32 s{t}, s13, 1280
    v_mul_u32_u24 v62, {rows4}, v61
    v_add_u32 v62, s{t}, v62
    s_lshl_b32 s{t2}, s12, 4
    v_add_u32 v63, s{t2}, v60
    v_lshl_add_u32 v{st4}, v63, 4, v62
    v_lshl_add_u32 v{st1}, v63, 2, v62
    ; column bytes of the fifth chunk: 320 g + 256 + 4 c
    v_mul_u32_u24 v63, 320, v61
    v_lshl_add_u32 v{c5}, v60, 2, v63
    ; reduce loads: partial 8w + g (+4), granule c
    s_lshl_b32 s{t}, s12, 3
    v_add_u32 v62, s{t}, v61
    v_mul_u32_u24 v63, 1280, v62
    v_lshl_add_u32 v{ra}, v60, 4, v63
    v_mov_b32 v64, 0x7f000000
    v_cmp_gt_u32 vcc, 27, v62
    v_cndmask_b32 v{rb}, v64, v{ra}, vcc
    ; reduce scratch write: L_RED + 2560 w + (g>>1)*512 + 32 c + 16 (g&1)
    s_mul_i32 s{t}, s12, 2560
    s_add_u32 s{t}, s{t}, {lred}
    v_lshrrev_b32 v62, 1, v61
    v_lshlrev_b32 v62, 9, v62
    v_lshl_add_u32 v62, v60, 5, v62
    v_and_b32 v63, 1, v61
    v_lshl_add_u32 v62, v63, 4, v62
    v_add_u32 v{rw}, s{t}, v62
    ; h2 store: column 128k + 2l -> chunk 16k + (l>>2): (l>>4)*2048 + ((l>>2)&3)*256 + 4 (l&3) + row part
    v_lshlrev_b32 v62, 11, v61
    v_bfe_u32 v63, v{l}, 2, 2
    v_lshl_add_u32 v62, v63, 8, v62
    v_and_b32 v63, 3, v{l}
    v_lshl_add_u32 v62, v63, 2, v62
    s_lshr_b32 s{t}, s13, 4
    s_lshl_b32 s{t}, s{t}, 10
    s_and_b32 s{t2}, s13, 15
    s_lshl_b32 s{t2}, s{t2}, 4
    s_add_u32 s{t}, s{t}, s{t2}
    v_add_u32 v{h2}, s{t}, v62
    ; act write: L_ACT + (w>>1)*1024 + 16 lane + 8 (w&1)
    s_lshr_b32 s{t}, s12, 1
    s_lshl_b32 s{t}, s{t}, 10
    s_and_b32 s{t2}, s12, 1
    s_lshl_b32 s{t2}, s{t2}, 3
    s_add_u32 s{t}, s{t}, s{t2}
    s_add_u32 s{t}, s{t}, {lact}
    v_add_u32 v{aw}, s{t}, v{l16}
    ; selection matrices
    v_and_b32 v62, 16, v{l16}
    s_movk_i32 s{t}, 0x3f80
    v_lshlrev_b32_e64 v62, v62, s{t}
    v_lshrrev_b32 v63, 1, v60
    '''.format(l=vL, l16=vL16, l4=vL4, km=vKM, t=sT, t2=sT2, lo=L_O, ow=vOW, rows4=4 * ROWS, st4=vSt4, st1=vSt1, c5=vC5, ra=vRA, rb=vRB,
               lred=L_RED, rw=vRW, h2=vH2, lact=L_ACT, aw=vAW))
    for i in range(8): p('v_cmp_eq_u32 vcc, %d, v63\nv_cndmask_b32 v%d, 0, v62, vcc' % (i, SEL + i))
    p('s_and_b32 s{t}, s12, 1\ns_lshl_b32 s{t}, s{t}, 4\nv_add_u32 v62, s{t}, v60\nv_lshlrev_b32 v63, 2, v61\nv_sub_u32 v62, v62, v63'.format(t=sT))
    for T in (0, 1):
        for i in range(4): p('v_cmp_le_i32 s[%d:%d], %d, v62' % (mMask + 8 * T + 2 * i, mMask + 8 * T + 2 * i + 1, 16 * T + i))
    p('''
    s_lshl_b32 s{t}, s{y}, 22
    s_add_u32 s{pa}, s{t}, {post}
    s_add_u32 s{pb}, s{pa}, {pbo}
    s_add_u32 s{h2}, s{pa}, {h2o}
    s_mul_i32 s{t}, s13, {rows}
    s_add_u32 s{rowa}, s{pa}, s{t}
    s_add_u32 s{rowb}, s{pb}, s{t}
    s_lshl_b32 s{t}, s{y}, 9
    s_add_u32 s{fl}, s{t}, {fu}
    s_mov_b32 s{seg}, s{y}
    s_mov_b32 s{it}, 1
    s_mov_b32 s{sc}, {scv}
    '''.format(t=sT, y=sY, pa=sPA, post=WS_POST, pb=sPB, pbo=PART_B, h2=sH2, h2o=H2, rows=ROWS, rowa=sRowA, rowb=sRowB, fl=sFl, fu=WS_FU,
               seg=sSeg, it=sIt, sc=sScale, scv=f2hex(1.4426950408889634 * 128 ** -0.5)))
    p('''
    s_lshr_b32 s{t}, s13, 1
    s_lshl_b32 s{t}, s{t}, 8
    s_add_u32 s{t}, s{t}, {fq}
    s_mov_b32 s{t2}, {mod}
    {l}:
    s_mov_b64 exec, 0x7777
    buffer_load_dword v60, v{l16}, s[4:7], s{t} offen sc1
    s_mov_b64 exec, -1
    '''.format(t=sT, t2=sT2, fq=WS_FQKV, mod=WS_MOD + 2560, l=L('L_p_w0'), l16=vL16))
    for j in range(20):
        if j == 15: p('s_add_u32 s%d, s%d, 3840' % (sT3, sT2))
        p('buffer_load_dword v%d, v%d, s[4:7], s%d offen offset:%d sc1' % (MODV + j, col(j % 5)[0], sT2 if j < 15 else sT3, 1280 * ((j % 15) // 5) + col(j % 5)[1]))
    p('s_sub_u32 s{b}, s{b}, 1\ns_cbranch_scc1 L_end\ns_waitcnt vmcnt(0)'.format(b=sBud))
    p('v_max_u32 v61, v%d, v%d' % (MODV, MODV + 1))
    for j in range(1, 10): p('v_max3_u32 v61, v61, v%d, v%d' % (MODV + 2 * j, MODV + 2 * j + 1))
    p('''
    v_cmp_eq_u32 vcc, -1, v61
    s_cbranch_vccnz {l}
    v_cmp_ne_u32 vcc, 16, v60
    s_and_b32 s{t3}, vcc_lo, 0x7777
    s_cbranch_scc1 {l}
    '''.format(l=L('L_p_w0'), t3=sT3))
    p('v_add_u32 v60, %d, v%d' % (L_MOD, vL16))
    for j in range(5): p('ds_write_b128 v60, %s offset:%d' % (vr(MODV + 4 * j, 4), 1024 * j))
    p('s_waitcnt lgkmcnt(0)')

    def seg_addrs():
        p('''
        s_lshl_b32 s{t}, s{seg}, 5
        s_add_u32 s{t}, s{t}, s13
        s_mul_i32 s{xo}, s{t}, 1280
        s_lshl_b32 s{q}, s{t}, 13
        s_and_b32 s{t2}, s12, 1
        s_lshl_b32 s{t2}, s{t2}, 10
        s_add_u32 s{q}, s{q}, s{t2}
        s_add_u32 s{q}, s{q}, {Q}
        s_lshl_b32 s{kv}, s{t}, 14
        s_add_u32 s{kv}, s{kv}, {KV}
        s_lshr_b32 s{km}, s{t}, 2
        s_lshl_b32 s{km}, s{km}, 14
        s_and_b32 s{t2}, s13, 3
        s_lshl_b32 s{t2}, s{t2}, 11
        s_add_u32 s{km}, s{km}, s{t2}
        s_add_u32 s{km}, s{km}, {KM}
        s_lshr_b32 s{t2}, s12, 1
        s_lshl_b32 s{t2}, s{t2}, 10
        s_add_u32 s{vm}, s{km}, s{t2}
        s_add_u32 s{vm}, s{vm}, 0x2000
        s_lshl_b32 s{t2}, s{t2}, 3
        s_add_u32 s{v}, s{kv}, s{t2}
        '''.format(t=sT, t2=sT2, seg=sSeg, xo=sXo, q=sQ, Q=WS_Q, kv=sKV, KV=WS_KV, km=sKM, KM=WS_KM, vm=sVM, VM=WS_VM, v=sV))
    Q, K, V = IN, IN + 16, IN + 48

    def fetch_list():
        r = []
        for w in range(4):
            pre = 's_add_u32 s%d, s%d, 4096\n' % (sQ, sQ) if w == 2 else ''
            r.append(pre + 'buffer_load_dwordx4 %s, v%d, s[4:7], s%d offen offset:%d sc1' % (vr(Q + 4 * w, 4), vL16, sQ, (w & 1) * 2048))
        for w in range(4):
            pre = 's_add_u32 s{kv}, s{kv}, 4096\n'.format(kv=sKV) if w else ''
            if w == 2: pre += 's_add_u32 s{v}, s{v}, 4096\n'.format(v=sV)
            for T in (0, 1):
                r.append(pre + 'buffer_load_dwordx4 %s, v%d, s[4:7], s%d offen offset:%d sc1' % (vr(K + 8 * w + 4 * T, 4), vL16, sKV, T * 1024)); pre = ''
            r.append('buffer_load_dwordx4 %s, v%d, s[4:7], s%d offen offset:%d sc1' % (vr(V + 4 * w, 4), vL16, sV, 2048 + 1024 * (w & 1)))
        return [x + ' nt' for x in r] if cfg.get('ntin') else r

    def fetch_inputs():
        for l in fetch_list(): p(l)
    KMr, VMr, S = WK + 44, WK + 60, WK

    def fetch_km():
        p('v_lshlrev_b32 v%d, 1, v%d' % (vL8, vL4))
        for w in range(4):
            p('buffer_load_dwordx4 %s, v%d, s[4:7], s%d offen offset:%d sc1' % (vr(KMr + 4 * w, 4), vKM, sKM, 512 * w))
            if w < 2: p('buffer_load_dwordx2 %s, v%d, s[4:7], s%d offen offset:%d sc1' % (vr(VMr + 2 * w, 2), vL8, sVM, 512 * w))

    def probe_km():
        p('v_lshlrev_b32 v%d, 1, v%d' % (vL8, vL4))
        p('s_mov_b32 exec_lo, 1\ns_mov_b32 exec_hi, 1\nbuffer_load_dword v%d, v%d, s[4:7], s%d offen offset:512 sc1\ns_mov_b64 exec, -1' % (VMr + 4, vL8, sVM))

    def signal(ph, n=0, it=sIt):
        l = p.newlabel(L('L_ps'))
        p('''
        s_waitcnt vmcnt({n})
        s_barrier
        s_cmp_lg_u32 s12, 0
        s_cbranch_scc1 {l}
        s_lshl_b32 s{t}, s13, 2
        s_add_u32 s{t}, s{t}, s{fl}
        v_mov_b32 v2, s{it}
        s_mov_b64 exec, 1
        buffer_store_dword v2, v{ln}, s[4:7], s{t} offen offset:{o}{st} ; nocount
        s_mov_b64 exec, -1
        {l}:
        '''.format(l=l, t=sT, fl=sFl, it=it, ln=vL, o=128 * ph, st=st, n=n))

    def await_(ph, n, prev=False, bar=True):
        l = p.newlabel(L('L_pw'))
        p('''
        s_cmp_lg_u32 s12, 0
        s_cbranch_scc1 {l}x
        s_mov_b32 exec_lo, {m}
        s_mov_b32 exec_hi, 0
        {l}:
        buffer_load_dword v2, v{l4}, s[4:7], s{fl} offen offset:{o} sc1
        s_sub_u32 s{b}, s{b}, 1
        s_cbranch_scc1 L_end
        s_waitcnt vmcnt(0)
        v_cmp_gt_u32 vcc, s{it}, v2
        s_cbranch_vccnz {l}
        s_mov_b64 exec, -1
        {l}x:
        '''.format(l=l, m=hex((1 << n) - 1), l4=vL4, fl=sFl, o=128 * ph, b=sBud, it=93 if prev else sIt))
        if bar: p('s_barrier')

    def gemm_out(nks, afrag, bfrag, base, O, pre=None):
        AC = WK
        pend = []
        for T in (0, 1):
            n = 0
            for t in range(10):
                for ks in range(nks):
                    a = vr(AC + 4 * t, 4)
                    p('v_mfma_f32_16x16x32_bf16 %s, %s, %s, %s' % (a, afrag(T, ks), bfrag(T, t, ks), a if ks else '0'))
                    if pre:
                        for l in pre(T, t, ks): p(l)
                    if pend and ks == nks - 1: p(pend.pop(0))
            for l in pend: p(l)
            pend = []
            for i in range(4):
                for d in range(5): p('v_cvt_pk_bf16_f32 v%d, v%d, v%d' % (O + 4 * i + d if d < 4 else O + 16 + i, AC + 8 * d + i, AC + 8 * d + 4 + i))
                l1 = 's_add_u32 s%d, s%d, %d\nbuffer_store_dwordx4 %s, v%d, s[4:7], s%d offen%s' % (sT, base, (16 * T + i) * ROWS, vr(O + 4 * i, 4), vSt4, sT, st)
                l2 = 'buffer_store_dword v%d, v%d, s[4:7], s%d offen offset:1024%s' % (O + 16 + i, vSt1, sT, st)
                if T: p(l1); p(l2)
                else: pend += [l1, l2]

    def reduce(row, second, mid=None):
        LD, D = WK, WK + 40
        p('s_add_u32 s%d, s%d, 5120' % (sT, row))
        for a in (0, 1):
            va = vRB if second else vRA
            if second and a == 1:
                p('s_cmp_eq_u32 s12, 3\ns_cselect_b32 s%d, 0x7f000000, 0\nv_or_b32 v3, s%d, v%d' % (sT2, sT2, vRB)); va = 3
            for ch in range(5):
                p('buffer_load_dwordx4 %s, v%d, s[4:7], s%d offen offset:%d sc1' % (vr(LD + 20 * a + 4 * ch, 4), va, sT if a else row, 256 * ch))
        if mid: mid()
        for a in (0, 1):
            for ch in range(5):
                d = vr(D + 4 * (ch >> 1), 4)
                p('v_mfma_f32_16x16x32_bf16 %s, %s, %s, %s' % (d, vr(SEL + 4 * (ch & 1), 4), vr(LD + 20 * a + 4 * ch, 4), d if (a or ch & 1) else '0'))
        p('ds_write_b128 v%d, %s\nds_write_b128 v%d, %s offset:1024' % (vRW, vr(D, 4), vRW, vr(D + 4, 4)))
        p('s_mov_b32 exec_hi, 0\nds_write_b128 v%d, %s offset:2048\ns_mov_b64 exec, -1' % (vRW, vr(D + 8, 4)))
        p('v_lshlrev_b32 v2, 1, v%d\nv_add_u32 v2, %d, v2\ns_waitcnt lgkmcnt(0)\ns_barrier' % (vL4, L_RED))

    def gather(js):
        R = WK
        p('v_add_u32 v3, %d, v%d' % (L_MOD, vL16))
        for j in js: p('ds_read_b128 %s, v3 offset:%d' % (vr(MODV + 4 * j, 4), 1024 * j))
        for w in range(4):
            for k in range(5): p('ds_read_b64 %s, v2 offset:%d' % (vr(R + 10 * w + 2 * k, 2), 2560 * w + 512 * k))
        for k in range(5):
            r = R + 2 * k
            p('v_pk_add_f32 %s, %s, %s' % (vr(r, 2), vr(r, 2), vr(r + 10, 2)))
            p('v_pk_add_f32 %s, %s, %s' % (vr(r + 20, 2), vr(r + 20, 2), vr(r + 30, 2)))
            p('v_pk_add_f32 %s, %s, %s' % (vr(r, 2), vr(r, 2), vr(r + 20, 2)))

    def wavesum(r, t):
        for q in ('quad_perm:[1,0,3,2]', 'quad_perm:[2,3,0,1]', 'row_ror:4', 'row_ror:8'):
            p('v_add_f32_dpp v%d, v%d, v%d %s row_mask:0xf bank_mask:0xf' % (r, r, r, q))
        xsum(p, r, t)

    def rnd(r):
        p('v_cvt_pk_bf16_f32 v%d, v%d, v%d' % (r + 1, r, r + 1)); unpack2(r + 1, r)

    def unpack2(src, d): p('v_lshlrev_b32 v%d, 16, v%d\nv_and_b32 v%d, 0xffff0000, v%d' % (d, src, d + 1, src))

    EV(p, cfg, 11)
    seg_addrs()
    fetch_inputs()
    R, U = WK, WK + 10
    sDef = 96

    def final(tag):
        p('s_cmp_lg_u32 s12, 0\ns_cbranch_scc1 ' + L('L_p_nx' + tag))
        gather((3,))
        for k in range(5):
            rnd(R + 2 * k); unpack2(MODV + 15 + k, U)
            p('v_pk_fma_f32 %s, %s, %s, %s' % (vr(U, 2), vr(R + 2 * k, 2), vr(U, 2), vr(X1 + 2 * k, 2)))
            if cfg.get('perturb') and k == 0: p('v_add_f32 v%d, %s, v%d' % (U, f2hex(cfg['perturb']), U))
            p('v_cvt_pk_bf16_f32 v%d, v%d, v%d' % (U + 2 + k, U, U + 1))
            p('buffer_store_dword v%d, v%d, %s, s92 offen offset:%d' % (U + 2 + k, col(k)[0], srd(sOut), col(k)[1]))
        p(L('L_p_nx' + tag) + ':')
    fetch_km()
    p('s_mov_b32 s%d, 0\ns_waitcnt vmcnt(6)' % sDef)
    p(L('L_p_loop') + ':')
    PT('top')
    for T in (0, 1):
        for w in range(4):
            d = vr(S + 4 * T, 4)
            p('v_mfma_f32_16x16x32_bf16 %s, %s, %s, %s' % (d, vr(K + 8 * w + 4 * T, 4), vr(Q + 4 * w, 4), d if w else '0'))
    p('v_mov_b32 v3, 0xff800000\ns_sub_u32 s93, s%d, 1' % sIt)
    p('s_cmp_eq_u32 s%d, 0\ns_cbranch_scc1 %s' % (sDef, L('L_p_km1')))
    signal(2, 6, 93)
    p('s_branch ' + L('L_p_km1'))
    p(L('L_p_pr') + ':')
    p('s_cmp_ge_u32 s%d, 58\ns_cbranch_scc1 %s' % (sSeg, L('L_p_km')))
    p('s_sleep %d' % cfg.get('psleep', 2))
    probe_km()
    p('''
    s_sub_u32 s{b}, s{b}, 1
    s_cbranch_scc1 L_end
    s_waitcnt vmcnt(0)
    v_cmp_eq_u32 vcc, -1, v{v}
    s_or_b32 s{t}, vcc_lo, vcc_hi
    s_bitcmp1_b32 s{t}, 0
    s_cbranch_scc1 {l}
    '''.format(b=sBud, v=VMr + 4, t=sT, l=L('L_p_pr')))
    p(L('L_p_km') + ':')
    fetch_km()
    p(L('L_p_km1') + ':')
    p('''
    s_sub_u32 s{b}, s{b}, 1
    s_cbranch_scc1 L_end
    s_waitcnt vmcnt(0)
    v_max3_u32 v2, v{k0}, v{k1}, v{k2}
    v_max3_u32 v2, v2, v{k3}, v{v0}
    v_max_u32 v2, v2, v{v1}
    v_cmp_eq_u32 vcc, -1, v2
    s_cbranch_vccnz {l}
    '''.format(b=sBud, k0=KMr, k1=KMr + 4, k2=KMr + 8, k3=KMr + 12, v0=VMr, v1=VMr + 2, l=L('L_p_pr')))
    EV(p, cfg, 31, WK + 30, dyn='s%d' % sIt)
    PT('km')
    for k in range(5): p('buffer_load_dword v%d, v%d, %s, s%d offen offset:%d' % (XR + k, col(k)[0], srd(sX), sXo, col(k)[1]))
    for w in range(4):
        d = vr(S + 8, 4)
        p('v_mfma_f32_16x16x32_bf16 %s, %s, %s, %s' % (d, vr(KMr + 4 * w, 4), vr(Q + 4 * w, 4), d if w else '0'))
    for j in range(8): p('v_cndmask_b32 v%d, v3, v%d, s[%d:%d]' % (S + j, S + j, mMask + 2 * j, mMask + 2 * j + 1))
    M, TM, P = S + 12, S + 13, S + 14
    p('v_max3_f32 v%d, v%d, v%d, v%d' % (M, S, S + 1, S + 2))
    for j in (3, 5, 7): p('v_max3_f32 v%d, v%d, v%d, v%d' % (M, M, S + j, S + j + 1))
    p('v_max_f32 v%d, v%d, v%d' % (M, M, S + 9))
    xsum(p, M, TM, 'max')
    p('v_mul_f32 v%d, s%d, v%d' % (M, sScale, M))
    for j in range(10): p('v_fma_f32 v%d, v%d, s%d, -v%d' % (S + j, S + j, sScale, M))
    for j in range(10): p('v_exp_f32 v%d, v%d' % (S + j, S + j))
    for j in range(5): p('v_cvt_pk_bf16_f32 v%d, v%d, v%d' % (P + j, S + 2 * j, S + 2 * j + 1))
    p('v_mov_b32 v%d, 0\nv_mov_b32 v%d, 0\nv_mov_b32 v%d, v%d' % (P + 5, P + 6, P + 7, P + 4))
    OD = KMr
    for w in range(4): p('v_mfma_f32_16x16x32_bf16 %s, %s, %s, 0' % (vr(OD + 4 * w, 4), vr(V + 4 * w, 4), vr(P, 4)))
    for w in range(4): p('v_mfma_f32_16x16x16_bf16 %s, %s, %s, %s' % (vr(OD + 4 * w, 4), vr(VMr + 2 * (w >> 1), 2), vr(P + 4 + 2 * (w & 1), 2), vr(OD + 4 * w, 4)))
    for j in range(1, 10): p('v_add_f32 v%d, v%d, v%d' % (S, S, S + j))
    xsum(p, S, TM)
    p('v_rcp_f32 v%d, v%d' % (S, S))
    for j in range(8): p('v_pk_mul_f32 %s, %s, %s op_sel_hi:[1,0]' % (vr(OD + 2 * j, 2), vr(OD + 2 * j, 2), vr(S, 2)))
    OP = S + 4
    for i in range(4):
        for hh in (0, 1): p('v_cvt_pk_bf16_f32 v%d, v%d, v%d' % (OP + 2 * i + hh, OD + 8 * hh + i, OD + 8 * hh + 4 + i))
    p('ds_write_b128 v%d, %s\nds_write_b128 v%d, %s offset:512' % (vOW, vr(OP, 4), vOW, vr(OP + 4, 4)))
    p('s_cmp_eq_u32 s%d, 0\ns_cbranch_scc1 %s' % (sDef, L('L_p_nd0')))
    await_(2, 27, True, False)
    p(L('L_p_nd0') + ':')
    p('v_add_u32 v2, %d, v%d\ns_waitcnt lgkmcnt(0)\ns_barrier' % (L_O, vL16))
    PT('obar')
    for j in range(8): p('ds_read_b128 %s, v2 offset:%d' % (vr(K + 4 * j, 4), 1024 * j))
    gemm_out(4, lambda T, ks: vr(K + 16 * T + 4 * ks, 4), lambda T, t, ks: wreg(16 * t + 4 * ks), sPA, WK + 40)
    PT('wo')
    p('s_cmp_eq_u32 s%d, 0\ns_cbranch_scc1 %s' % (sDef, L('L_p_nd1')))
    reduce(sRowB, True, lambda: signal(0, 10))
    final('d')
    p('s_branch %s\n%s:' % (L('L_p_nd2'), L('L_p_nd1')))
    signal(0)
    p(L('L_p_nd2') + ':')
    PT('sig0')
    await_(0, 32)
    PT('aw0')
    reduce(sRowA, False)
    PT('red0')
    p('s_cmp_lg_u32 s12, 0\ns_cbranch_scc1 ' + L('L_p_ln'))
    gather((0, 1, 2))
    for k in range(5):
        rnd(R + 2 * k); unpack2(MODV + k, U); unpack2(XR + k, U + 2)
        p('v_pk_fma_f32 %s, %s, %s, %s' % (vr(X1 + 2 * k, 2), vr(R + 2 * k, 2), vr(U, 2), vr(U + 2, 2)))
        rnd(X1 + 2 * k)
    p('v_pk_add_f32 %s, %s, %s' % (vr(U, 2), vr(X1, 2), vr(X1 + 2, 2)))
    for k in (2, 3, 4): p('v_pk_add_f32 %s, %s, %s' % (vr(U, 2), vr(U, 2), vr(X1 + 2 * k, 2)))
    p('v_add_f32 v%d, v%d, v%d' % (U, U, U + 1))
    wavesum(U, U + 1)
    p('v_mul_f32 v%d, %s, v%d' % (U, f2hex(-1.0 / 640), U))
    for k in range(5): p('v_pk_add_f32 %s, %s, %s op_sel_hi:[1,0]' % (vr(R + 2 * k, 2), vr(X1 + 2 * k, 2), vr(U, 2)))
    p('v_pk_mul_f32 %s, %s, %s' % (vr(U, 2), vr(R, 2), vr(R, 2)))
    for k in range(1, 5): p('v_pk_fma_f32 %s, %s, %s, %s' % (vr(U, 2), vr(R + 2 * k, 2), vr(R + 2 * k, 2), vr(U, 2)))
    p('v_add_f32 v%d, v%d, v%d' % (U, U, U + 1))
    wavesum(U, U + 1)
    p('v_mov_b32 v%d, %s\nv_fmac_f32 v%d, %s, v%d\nv_rsq_f32 v%d, v%d' % (U + 1, f2hex(1e-5), U + 1, f2hex(1.0 / 640), U, U, U + 1))
    for k in range(5):
        unpack2(MODV + 10 + k, U + 2); unpack2(MODV + 5 + k, U + 4)
        p('v_pk_add_f32 %s, %s, 1.0 op_sel_hi:[1,0]' % (vr(U + 2, 2), vr(U + 2, 2)))
        p('v_pk_mul_f32 %s, %s, %s op_sel_hi:[1,0]' % (vr(R + 2 * k, 2), vr(R + 2 * k, 2), vr(U, 2)))
        p('v_pk_fma_f32 %s, %s, %s, %s' % (vr(U + 2, 2), vr(R + 2 * k, 2), vr(U + 2, 2), vr(U + 4, 2)))
        p('v_cvt_pk_bf16_f32 v%d, v%d, v%d' % (U + 6 + k, U + 2, U + 3))
        p('s_add_u32 s%d, s%d, %d\nbuffer_store_dword v%d, v%d, s[4:7], s%d offen%s' % (sT, sH2, 8192 * k, U + 6 + k, vH2, sT, st))
    p(L('L_p_ln') + ':')
    PT('ln')
    signal(1)
    PT('sig1')
    p('s_mov_b32 s92, s%d' % sXo)
    p('s_add_u32 s%d, s%d, 6' % (sSeg, sSeg))
    seg_addrs()
    p('s_cmp_ge_u32 s13, 27\ns_cbranch_scc1 ' + L('L_p_noffn'))
    await_(1, 32)
    PT('aw1')
    p('s_lshl_b32 s%d, s12, 10' % sT3)
    for i in range(10):
        p('s_add_u32 m0, s%d, %d\ns_add_u32 s%d, s%d, m0' % (sT3, i * 4096, sT, sH2))
        p('buffer_load_dwordx4 v%d, s[4:7], s%d offen sc1 lds' % (vL16, sT))
    p('s_waitcnt vmcnt(6)\ns_barrier')
    PT('dma')
    H, G = WK, WK + 24
    rd = lambda ks, T: 'ds_read_b128 %s, v%d offset:%d' % (vr(H + 8 * (ks % 3) + 4 * T, 4), vL16, ks * 2048 + T * 1024)
    for ks in (0, 1):
        for T in (0, 1): p(rd(ks, T))
    fl = fetch_list()
    for ks in range(20):
        if ks == 6: p('s_waitcnt vmcnt(0)\ns_barrier')
        for T in (0, 1):
            for m in (0, 1):
                a = vr(G + 8 * T + 4 * m, 4)
                p('v_mfma_f32_16x16x32_bf16 %s, %s, %s, %s' % (a, wreg(160 + 8 * ks + 4 * m), vr(H + 8 * (ks % 3) + 4 * T, 4), a if ks else '0'))
                if m == 0 and ks + 2 < 20: p(rd(ks + 2, T))
                if m == 1 and ks >= 6 and (T == 1 or ks in (6, 7)) and fl: p(fl.pop(0))
    assert not fl
    PT('gu')
    for T in (0, 1):
        g = G + 8 * T
        for j in range(0, 8, 2): rnd(g + j)
        for i in range(4): p('v_max_f32 v%d, 0, v%d\nv_mul_f32 v%d, v%d, v%d' % (g + i, g + i, g + i, g + i, g + 4 + i))
        p('v_cvt_pk_bf16_f32 v%d, v%d, v%d\nv_cvt_pk_bf16_f32 v%d, v%d, v%d' % (g, g, g + 1, g + 1, g + 2, g + 3))
        p('ds_write_b64 v%d, %s offset:%d' % (vAW, vr(g, 2), 2048 * T))
    p('v_add_u32 v2, %d, v%d\ns_waitcnt lgkmcnt(0)\ns_barrier' % (L_ACT, vL16))
    PT('act')
    gen_down(p, gemm_out)
    PT('down')
    p('s_branch ' + L('L_p_fin'))
    p(L('L_p_noffn') + ':')
    fetch_inputs()
    p('s_waitcnt vmcnt(0)')
    p(L('L_p_fin') + ':')
    p('s_cmp_lt_u32 s%d, %d\ns_cselect_b32 s%d, 1, 0\ns_cbranch_scc0 %s' % (sSeg, cfg.get('defer', 46), sDef, L('L_p_dir')))
    fetch_km()
    p('s_waitcnt vmcnt(22)')
    p('s_branch ' + L('L_p_end'))
    p(L('L_p_dir') + ':')
    signal(2)
    PT('sig2')
    await_(2, 27)
    PT('aw2')
    reduce(sRowB, True)
    fetch_km()
    PT('red1')
    final('')
    p(L('L_p_end') + ':')
    PT('end')
    if cfg.get('ptrace'):
        p('s_cmp_lg_u32 s%d, %d\ns_cbranch_scc1 L_p_ntr\ns_lshl_b32 s94, s%d, 2\ns_add_u32 s94, s94, s12\ns_lshl_b32 s94, s94, 8\ns_add_u32 s94, s94, %d\nbuffer_store_dword v59, v%d, s[4:7], s94 offen\nL_p_ntr:' % (sIt, cfg['ptrace'], sWi, WS_STAMP + 0x20000, vL4))
    EV(p, cfg, 15, dyn='s%d' % sIt)
    p('s_add_u32 s%d, s%d, 1\ns_cmp_lt_u32 s%d, 64\ns_cbranch_scc1 %s' % (sIt, sIt, sSeg, L('L_p_loop')))
    p('s_branch L_end')


def gen_down(p, gemm_out):
    O, AF, BS = WK + 40, WK + 60, DS
    rdB = lambda n: 'ds_read_b128 %s, v%d offset:%d' % (vr(BS + 4 * (n & 3), 4), vWD, (n % 20) * 1024)
    rdA = lambda T: ['ds_read_b128 %s, v2 offset:%d' % (vr(AF + 4 * ks, 4), 2048 * T + 1024 * ks) for ks in (0, 1)]
    for l in rdA(0): p(l)
    for n in range(4): p(rdB(n))

    def pre(T, t, ks):
        n = 20 * T + 2 * t + ks
        r = [rdB(n + 4)] if n + 4 < 40 else []
        if n == 19: r += rdA(1)
        return r
    gemm_out(2, lambda T, ks: vr(AF + 4 * ks, 4), lambda T, t, ks: vr(BS + 4 * ((2 * t + ks) & 3), 4), sPB, O, pre)
```

```python
from layout import *

sX, sC, sWm, sW, sWo, sWg, sWu, sWd, sOut = 16, 20, 24, 28, 32, 36, 40, 44, 48
sY, sWi, sBud, sSel0, sSel1, sT, sT2, sT3 = 52, 53, 54, 56, 57, 58, 59, 60
DBG_GO, DBG_CHAIN = 192, 96
DBG_PAR = 224
vL = 0
vL16 = 1
RO8 = 'row_ror:8 row_mask:0xf bank_mask:0xf'
RO4 = 'row_ror:4 row_mask:0xf bank_mask:0xf'


def vr(b, n): return 'v[%d:%d]' % (b, b + n - 1)
def srd(s): return 's[%d:%d]' % (s, s + 3)


def xsum(p, r, t, op='add'):
    for sw in ('16', '32'):
        p('v_mov_b32 v%d, v%d\nv_permlane%s_swap_b32 v%d, v%d\nv_%s_f32 v%d, v%d, v%d' % (t, r, sw, r, t, op, r, r, t))


def arrive(p, off, wait=True, v=2):
    l = p.newlabel('L_arr')
    if wait: p('s_waitcnt vmcnt(0)')
    p('''
    s_barrier
    s_cmp_lg_u32 s12, 0
    s_cbranch_scc1 {l}
    v_mov_b32 v{v}, 1
    v_mov_b32 v{v1}, {off}
    s_mov_b64 exec, 1
    buffer_atomic_add v{v}, v{v1}, s[8:11], 0 offen ; nocount
    s_mov_b64 exec, -1
    {l}:
    '''.format(l=l, off=off, v=v, v1=v + 1))


def wait_count(p, off, n, bud, v=2, st=sT, mask=-1, keep=None):
    l = p.newlabel('L_cnt')
    p('''
    v_mov_b32 v{a}, {off}
    {l}:
    s_mov_b64 exec, 1
    buffer_load_dword v{d}, v{a}, s[8:11], 0 offen sc1
    s_mov_b64 exec, -1
    s_sub_u32 s{bud}, s{bud}, 1
    s_cbranch_scc1 L_end
    s_waitcnt vmcnt(0)
    v_readfirstlane_b32 s{keep}, v{d}
    s_and_b32 s{st}, s{keep}, {mask}
    s_cmp_eq_u32 s{st}, {n}
    s_cbranch_scc1 {l}x
    s_sleep 4
    s_branch {l}
    {l}x:
    '''.format(l=l, off=off, n=n, bud=bud, a=v + 1, d=v, st=st, mask=mask, keep=st if keep is None else keep))


def gen_clear_ctrl(p):
    p('''
    s_cmp_lg_u32 s{wi}, 0
    s_cbranch_scc1 L_w_noclr
    s_lshl_b32 s{t}, s12, 10
    v_mov_b64 v[4:5], 0
    v_mov_b64 v[6:7], 0
    v_mov_b64 v[8:9], -1
    v_mov_b64 v[10:11], -1
    '''.format(wi=sWi, t=sT))
    for i in range(6): p('buffer_store_dwordx4 %s, v%d, s[4:7], s%d offen sc1\ns_add_u32 s%d, s%d, 4096' % (vr(4 if i < 4 else 8, 4), vL16, sT, sT, sT))
    arrive(p, DBG_GO)
    p('L_w_noclr:')


def gen_probe(p, cfg):
    p('''
    s_cmp_lg_u32 s12, 0
    s_cbranch_scc1 L_w_noprobe
    s_sub_u32 s74, s{wi}, 1
    s_cmp_ge_u32 s74, 1
    s_cbranch_scc1 L_w_noprobe
    s_mov_b32 s66, -1
    s_mov_b32 s67, -1
    s_lshl_b32 s{t}, s74, 21
    s_add_u32 s{t}, s{t}, {a0}
    s_add_u32 s{t2}, s{t}, 0x2000
    s_mov_b32 s{t3}, 2
    v_mov_b32 v2, -1
    s_mov_b64 exec, 1
    L_w_probe:
    s_waitcnt vmcnt(0)
    s_memtime s[76:77]
    s_waitcnt lgkmcnt(0)
    buffer_store_dword v2, v{l}, s[4:7], s{t} offen sc1
    s_waitcnt vmcnt(0)
    s_memtime s[78:79]
    s_waitcnt lgkmcnt(0)
    buffer_store_dword v2, v{l}, s[4:7], s{t2} offen sc1
    s_waitcnt vmcnt(0)
    s_memtime s[72:73]
    s_waitcnt lgkmcnt(0)
    s_sub_u32 s76, s78, s76
    s_min_u32 s66, s66, s76
    s_sub_u32 s78, s72, s78
    s_min_u32 s67, s67, s78
    s_sub_u32 s{t3}, s{t3}, 1
    s_cmp_lg_u32 s{t3}, 0
    s_cbranch_scc1 L_w_probe
    s_cmp_lt_u32 s67, s66
    s_cselect_b32 s{t}, 0x2000, 0
    s_lshl_b32 s{t}, s{t}, s74
    s_add_u32 s{t}, s{t}, 1
    v_mov_b32 v2, s{t}
    buffer_atomic_add v2, v{l}, s[8:11], 0 offen offset:{o}
    s_mov_b64 exec, -1
    L_w_noprobe:
    s_barrier
    '''.format(t=sT, t2=sT2, t3=sT3, wi=sWi, a0=WS_REM + 7680, l=vL, o=DBG_PAR))


def gen_mod_loads(p, W, Cv):
    p('''
    v_lshrrev_b32 v2, 2, v{l}
    s_mul_i32 s{t}, s12, 160
    v_add_u32 v2, s{t}, v2             ; row
    v_lshlrev_b32 v3, 1, v2
    v_mul_u32_u24 v2, 7680, v2
    v_and_b32 v{w}, 3, v{l}
    v_lshl_add_u32 v2, v{w}, 4, v2
    s_mul_i32 s{t}, s{q}, 1280
    s_lshl_b32 s{t2}, s13, 6
    s_add_u32 s{t}, s{t}, s{t2}
    '''.format(l=vL, t=sT, t2=sT2, q=sT3, w=W))
    for i in range(10): p('buffer_load_ushort v%d, v3, %s, 0 offen offset:%d' % (Cv + i, srd(sC), 32 * i))
    for i in range(10):
        p('buffer_load_dwordx4 %s, v2, %s, s%d offen' % (vr(W + 4 * i, 4), srd(sWm), sT))
        p('s_add_u32 s%d, s%d, %d' % (sT, sT, 16 * 7680))


def gen_mod_compute(p, W, Cv, A):
    for i in range(10):
        c = Cv + i
        p('''
        v_lshlrev_b32 v{c}, 16, v{c}
        v_mul_f32 v{t}, 0xbfb8aa3b, v{c}
        v_exp_f32 v{t}, v{t}
        v_add_f32 v{t}, 1.0, v{t}
        v_rcp_f32 v{t}, v{t}
        v_mul_f32 v{c}, v{c}, v{t}
        v_cvt_pk_bf16_f32 v{c}, v{c}, v{c}
        v_and_b32 v{c}, 0xffff0000, v{c}
        '''.format(c=c, t=A + 8))
    for i in range(10):
        for d in range(4):
            w = W + 4 * i + d
            p('v_lshlrev_b32 v%d, 16, v%d\nv_and_b32 v%d, 0xffff0000, v%d' % (A + 8, w, A + 9, w))
            if i == 0: p('v_mul_f32 v%d, v%d, v%d\nv_mul_f32 v%d, v%d, v%d' % (A + 2 * d, A + 8, Cv, A + 2 * d + 1, A + 9, Cv))
            else: p('v_fmac_f32 v%d, v%d, v%d\nv_fmac_f32 v%d, v%d, v%d' % (A + 2 * d, A + 8, Cv + i, A + 2 * d + 1, A + 9, Cv + i))
    for ro in (RO4, RO8):
        for j in range(8): p('v_add_f32_dpp v%d, v%d, v%d %s' % (A + j, A + j, A + j, ro))
    for j in range(8): xsum(p, A + j, A + 8)
    p('''
    s_lshl_b32 s{t}, s12, 7
    v_lshlrev_b32 v2, 5, v{l}
    v_add_u32 v2, s{t}, v2
    s_mov_b64 exec, 15
    ds_write_b128 v2, {a0}
    ds_write_b128 v2, {a1} offset:16
    s_mov_b64 exec, -1
    s_waitcnt lgkmcnt(0)
    s_barrier
    v_and_b32 v2, 15, v{l}
    v_lshlrev_b32 v2, 3, v2
    '''.format(t=sT, l=vL, a0=vr(A, 4), a1=vr(A + 4, 4)))
    for w in range(4): p('ds_read_b64 %s, v2 offset:%d' % (vr(A + 2 * w, 2), 128 * w))
    p('''
    v_pk_add_f32 {a}, {a}, {b}
    v_pk_add_f32 {c}, {c}, {d}
    v_pk_add_f32 {a}, {a}, {c}
    v_cvt_pk_bf16_f32 v{A}, v{A}, v{A1}
    v_min_u32 v{A}, -2, v{A}
    '''.format(a=vr(A, 2), b=vr(A + 2, 2), c=vr(A + 4, 2), d=vr(A + 6, 2), A=A, A1=A + 1))


def gen_mod_store(p, A):
    l = p.newlabel('L_mst')
    p('''
    s_cmp_lg_u32 s12, 0
    s_cbranch_scc1 {l}
    s_mul_i32 s{t}, s{q}, 1280
    s_lshl_b32 s{t2}, s13, 6
    s_add_u32 s{t}, s{t}, s{t2}
    s_add_u32 s{t}, s{t}, {mod}
    v_lshlrev_b32 v2, 2, v{ln}
    s_mov_b64 exec, 0xffff
    buffer_store_dword v{A}, v2, s[4:7], s{t} offen sc1
    s_mov_b64 exec, -1
    {l}:
    '''.format(l=l, t=sT, t2=sT2, q=sT3, mod=WS_MOD, ln=vL, A=A))


def unpack(p, src, lo, hi):
    p('v_lshlrev_b32 v%d, 16, v%d\nv_and_b32 v%d, 0xffff0000, v%d' % (lo, src, hi, src))


def gen_ln1a(p, XR):
    XF, SA, CA, T = 80, 160, 200, 8
    for i in range(40): unpack(p, XR + i, XF + 2 * i, XF + 2 * i + 1)
    p('v_pk_add_f32 %s, %s, %s' % (vr(T, 2), vr(XF, 2), vr(XF + 2, 2)))
    for i in range(2, 40): p('v_pk_add_f32 %s, %s, %s' % (vr(T, 2), vr(T, 2), vr(XF + 2 * i, 2)))
    p('v_add_f32 v%d, v%d, v%d' % (T, T, T + 1))
    p('v_add_f32_dpp v%d, v%d, v%d %s' % (T, T, T, RO8))
    xsum(p, T, T + 1)
    p('v_mul_f32 v%d, %s, v%d' % (T, f2hex(-1.0 / 640), T))
    for i in range(40): p('v_pk_add_f32 %s, %s, %s op_sel_hi:[1,0]' % (vr(XF + 2 * i, 2), vr(XF + 2 * i, 2), vr(T, 2)))
    p('v_pk_mul_f32 %s, %s, %s' % (vr(T, 2), vr(XF, 2), vr(XF, 2)))
    for i in range(1, 40): p('v_pk_fma_f32 %s, %s, %s, %s' % (vr(T, 2), vr(XF + 2 * i, 2), vr(XF + 2 * i, 2), vr(T, 2)))
    p('v_add_f32 v%d, v%d, v%d' % (T, T, T + 1))
    p('v_add_f32_dpp v%d, v%d, v%d %s' % (T, T, T, RO8))
    xsum(p, T, T + 1)
    p('v_mov_b32 v%d, %s\nv_fmac_f32 v%d, %s, v%d\nv_rsq_f32 v%d, v%d' % (T + 1, f2hex(1e-5), T + 1, f2hex(1.0 / 640), T, T, T + 1))
    for i in range(40): p('v_pk_mul_f32 %s, %s, %s op_sel_hi:[1,0]' % (vr(XF + 2 * i, 2), vr(XF + 2 * i, 2), vr(T, 2)))


def gen_ln1b(p, XR):
    XF, SA, CA, T = 80, 160, 200, 8
    p('''
    s_lshl_b32 s{t}, s12, 10
    v_add_u32 v2, s{t}, v{l16}
    v_cmp_gt_u32 vcc, 2560, v2
    s_and_saveexec_b64 s[62:63], vcc
    s_cbranch_execz L_ln_got
    s_mov_b32 s{t}, {mod}
    L_ln_poll:
    buffer_load_dwordx4 v[12:15], v2, s[4:7], s{t} offen sc1
    s_sub_u32 s{b}, s{b}, 1
    s_cbranch_scc1 L_end
    s_waitcnt vmcnt(0)
    v_max3_u32 v3, v12, v13, v14
    v_max_u32 v3, v3, v15
    v_cmp_eq_u32 vcc, -1, v3
    s_cbranch_vccnz L_ln_poll
    ds_write_b128 v2, v[12:15] offset:1024
    L_ln_got:
    s_mov_b64 exec, -1
    v_lshrrev_b32 v2, 3, v{l}
    v_lshlrev_b32 v2, 4, v2
    s_waitcnt lgkmcnt(0)
    s_barrier
    '''.format(t=sT, l16=vL16, mod=WS_MOD, b=sBud, l=vL))
    for i in range(10):
        p('ds_read_b128 %s, v2 offset:%d' % (vr(CA + 4 * i, 4), 1024 + 1280 + 128 * i))
        p('ds_read_b128 %s, v2 offset:%d' % (vr(SA + 4 * i, 4), 1024 + 128 * i))
    p('''
    v_lshrrev_b32 v2, 5, v{l}
    v_lshlrev_b32 v2, 11, v2
    v_bfe_u32 v3, v{l}, 3, 2
    v_lshl_add_u32 v2, v3, 8, v2
    v_and_b32 v3, 7, v{l}
    v_lshl_add_u32 v2, v3, 4, v2
    s_sub_u32 s{t}, s{wi}, 128
    s_mul_i32 s{t}, s{t}, 40960
    s_lshr_b32 s{t2}, s12, 1
    s_lshl_b32 s{t2}, s{t2}, 10
    s_add_u32 s{t}, s{t}, s{t2}
    s_and_b32 s{t2}, s12, 1
    s_lshl_b32 s{t2}, s{t2}, 7
    s_add_u32 s{t}, s{t}, s{t2}
    s_add_u32 s{t}, s{t}, {h}
    '''.format(l=vL, t=sT, t2=sT2, wi=sWi, h=WS_H))
    for i in range(40):
        unpack(p, CA + i, T, T + 1); unpack(p, SA + i, T + 2, T + 3)
        p('v_pk_add_f32 %s, %s, 1.0 op_sel_hi:[1,0]' % (vr(T, 2), vr(T, 2)))
        p('v_pk_fma_f32 %s, %s, %s, %s' % (vr(T, 2), vr(XF + 2 * i, 2), vr(T, 2), vr(T + 2, 2)))
        p('v_cvt_pk_bf16_f32 v%d, v%d, v%d' % (XR + i, T, T + 1))
        if i % 4 == 3: p('buffer_store_dwordx4 %s, v2, s[4:7], s%d offen sc1\ns_add_u32 s%d, s%d, 4096' % (vr(XR + i - 3, 4), sT, sT, sT))
    p('''
    s_sub_u32 s{t}, s{wi}, 128
    s_lshl_b32 s{t}, s{t}, 2
    s_add_u32 s{t}, s{t}, s12
    s_lshl_b32 s{t}, s{t}, 2
    s_add_u32 s{t}, s{t}, {fh}
    v_mov_b32 v2, 1
    s_waitcnt vmcnt(0)
    s_mov_b64 exec, 1
    buffer_store_dword v2, v{l}, s[4:7], s{t} offen sc1
    s_mov_b64 exec, -1
    '''.format(t=sT, wi=sWi, fh=WS_FH, l=vL))


def wreg(i, n=4):
    return 'a[%d:%d]' % (i, i + n - 1) if i < 256 else vr(192 + i - 256, n)


def put(p, i, hi, lo, sel, tmp):
    if i < 256: p('v_perm_b32 v%d, v%d, v%d, s%d\nv_accvgpr_write_b32 a%d, v%d' % (tmp, hi, lo, sel, i, tmp))
    else: p('v_perm_b32 v%d, v%d, v%d, s%d' % (192 + i - 256, hi, lo, sel))


def pipeline(units, depth, issue, finish):
    for n in range(min(depth - 1, len(units))): issue(units[n], n % depth)
    for n, u in enumerate(units):
        if n + depth - 1 < len(units): issue(units[n + depth - 1], (n + depth - 1) % depth)
        finish(u, n % depth)


def gen_qkv_w(p):
    p('''
    v_lshrrev_b32 v2, 4, v{l}
    v_lshlrev_b32 v2, 16, v2
    v_and_b32 v3, 8, v{l}
    v_and_b32 v4, 3, v{l}
    v_lshl_add_u32 v3, v4, 1, v3
    v_bfe_u32 v4, v{l}, 2, 1
    v_add_u32 v3, v3, v4               ; K, Q
    v_and_b32 v4, 7, v{l}
    v_bfe_u32 v5, v{l}, 3, 1
    v_lshl_add_u32 v4, v4, 1, v5       ; V
    s_lshr_b32 s{t}, s{y}, 1
    s_cmp_eq_u32 s{t}, 1
    s_cselect_b64 vcc, -1, 0
    v_cndmask_b32 v3, v3, v4, vcc
    v_lshl_add_u32 v2, v3, 3, v2
    s_and_b32 s{t}, s{y}, 1
    s_lshl_b32 s{t}, s{t}, 3
    s_lshr_b32 s{t2}, s13, 2
    s_add_u32 s61, s{t}, s{t2}          ; head pair
    s_lshl_b32 s{t}, s61, 9
    s_lshl_b32 s{t2}, s12, 7
    s_add_u32 s{t}, s{t}, s{t2}
    v_add_u32 v2, s{t}, v2
    '''.format(l=vL, t=sT, t2=sT2, y=sY))

    def issue(ks, slot):
        for j in range(8):
            p('s_mov_b32 s%d, %d\nbuffer_load_dwordx2 %s, v2, %s, s%d offen' % (sT, (32 * ks + j) * 8192, vr(16 + 16 * slot + 2 * j, 2), srd(sW), sT))

    def finish(ks, slot):
        b = 16 + 16 * slot
        for i4 in range(4):
            for t in range(4):
                put(p, 16 * ks + 4 * t + i4, b + 4 * i4 + 2 + (t >> 1), b + 4 * i4 + (t >> 1), sSel0 + (t & 1), 8 + t)
    pipeline(list(range(20)), 8, issue, finish)


def gen_qkv_loop(p, cfg):
    sN, sSrc, sBuf, sDst, sStr, sFlag, sDm, sSn = 62, 63, 64, 65, 66, 67, 68, 69
    vT, vO, H, ACC, OUT = 2, 3, 8, 32, 64
    p('''
    v_lshrrev_b32 v2, 2, v{l}
    v_lshlrev_b32 v2, 6, v2
    v_and_b32 v3, 3, v{l}
    v_lshl_add_u32 v2, v3, 2, v2
    s_and_b32 s{t}, s13, 3
    s_lshl_b32 s{t}, s{t}, 4
    s_add_u32 s{t}, s{t}, {fh}
    L_q_hw:
    buffer_load_dword v3, v2, s[4:7], s{t} offen sc1
    s_sub_u32 s{b}, s{b}, 1
    s_cbranch_scc1 L_end
    s_waitcnt vmcnt(0)
    v_cmp_ne_u32 vcc, 1, v3
    s_cbranch_vccz L_q_hok
    s_sleep 4
    s_branch L_q_hw
    L_q_hok:
    s_and_b32 s{t}, s13, 3
    s_mul_i32 s{src}, s{t}, 40960
    s_mul_i32 s{buf}, s12, 10240
    s_add_u32 s{src}, s{src}, s{buf}
    s_add_u32 s{src}, s{src}, {h}
    s_lshl_b32 s{fl}, s61, 8
    s_lshl_b32 s{t2}, s{t}, 6
    s_add_u32 s{fl}, s{fl}, s{t2}
    s_lshr_b32 s{t2}, s{y}, 1
    s_lshl_b32 s{t2}, s{t2}, 4
    s_add_u32 s{fl}, s{fl}, s{t2}
    s_add_u32 s{fl}, s{fl}, {fq}
    ; destination: (segment*32 + head) << sh, sh = 13 for Q, 14 for K/V
    s_cmp_ge_u32 s{y}, 4
    s_cselect_b32 s{t3}, 13, 14
    s_mov_b32 s{dst}, {kv}
    s_cselect_b32 s{dst}, {q}, s{dst}
    s_lshl_b32 s{str}, 128, s{t3}
    s_lshl_b32 s{t}, s{t}, 5
    s_lshl_b32 s{t2}, s61, 1
    s_add_u32 s{t}, s{t}, s{t2}
    s_lshr_b32 s{t2}, s12, 1
    s_add_u32 s{t}, s{t}, s{t2}
    s_lshl_b32 s{t}, s{t}, s{t3}
    s_add_u32 s{dst}, s{dst}, s{t}
    s_mov_b32 s{n}, 0
    v_mov_b32 v{vt}, v{l16}
    ; not-yet-written marks for this segment's k_mem / v_mem pieces
    s_and_b32 s{t}, s13, 3
    s_lshl_b32 s{sn}, s{t}, 17
    s_lshr_b32 s{t}, s61, 1
    s_lshl_b32 s{t}, s{t}, 14
    s_add_u32 s{sn}, s{sn}, s{t}
    s_and_b32 s{t}, s61, 1
    s_lshl_b32 s{t}, s{t}, 12
    s_add_u32 s{sn}, s{sn}, s{t}
    s_and_b32 s{t}, s{y}, 2
    s_lshl_b32 s{t}, s{t}, 12
    s_add_u32 s{sn}, s{sn}, s{t}
    s_lshl_b32 s{t}, s12, 10
    s_add_u32 s{sn}, s{sn}, s{t}
    s_add_u32 s{sn}, s{sn}, {km}
    v_mov_b64 v[80:81], -1
    v_mov_b64 v[82:83], -1
    '''.format(sn=sSn, km=WS_KM, l=vL, t=sT, t2=sT2, t3=sT3, fh=WS_FH, b=sBud, src=sSrc, buf=sBuf, h=WS_H, fl=sFlag, y=sY, fq=WS_FQKV, dst=sDst,
               q=WS_Q, kv=WS_KV, str=sStr, n=sN, vt=vT, l16=vL16))

    def dma_list():
        r = []
        for i in range(10):
            pre = 's_add_u32 m0, s%d, %d\ns_add_u32 s%d, s%d, %d\n' % (sBuf, i * 1024, sDm, sSrc, i * 1024) if i % 4 == 0 else ''
            r.append(pre + 'buffer_load_dwordx4 v%d, s[4:7], s%d offen offset:%d sc1 lds' % (vL16, sDm, (i % 4) * 1024))
        r[-1] += '\ns_add_u32 s%d, s%d, %d\ns_xor_b32 s%d, s%d, 0x10000' % (sSrc, sSrc, 4 * 40960, sBuf, sBuf)
        return r

    def dma():
        for l in dma_list(): p(l)

    def flag():
        l = p.newlabel('L_qf')
        p('''
        s_barrier
        s_cmp_lg_u32 s12, 0
        s_cbranch_scc1 {l}
        v_mov_b32 v4, s{n}
        s_mov_b64 exec, 1
        buffer_store_dword v4, v{ln}, s[4:7], s{fl} offen sc1
        s_mov_b64 exec, -1
        {l}:
        '''.format(l=l, n=sN, ln=vL, fl=sFlag))
    EV(p, cfg, 8, 4)
    dma()
    p('s_lshr_b32 s%d, s%d, 1\ns_cmp_eq_u32 s%d, 1\ns_cbranch_scc1 L_q_v' % (sT, sY, sT))
    for isv in (0, 1):
        tag = 'v' if isv else 'k'
        if isv:
            p('L_q_v:')
            p('''
            s_and_b32 s{t}, s12, 1
            s_lshl_b32 s{t}, s{t}, 7
            s_add_u32 s{t}, s{t}, 2048
            v_and_b32 v4, 0x370, v{l16}
            v_bfe_u32 v5, v{l}, 3, 1
            v_lshl_add_u32 v4, v5, 13, v4
            v_add_u32 v{o}, s{t}, v4
            s_movk_i32 s70, 0x1000
            '''.format(t=sT, o=vO, l16=vL16, l=vL))
        else:
            p('''
            s_and_b32 s{t}, s12, 1
            s_lshl_b32 s{t}, s{t}, 9
            v_bfe_u32 v4, v{l}, 4, 1
            s_sub_u32 s{t3}, s{t3}, 1
            v_lshlrev_b32 v4, s{t3}, v4
            v_lshrrev_b32 v5, 5, v{l}
            v_lshl_add_u32 v4, v5, 8, v4
            v_and_b32 v5, 15, v{l}
            v_lshl_add_u32 v4, v5, 4, v4
            v_add_u32 v{o}, s{t}, v4
            s_sub_u32 s{t3}, s{t3}, 1
            s_lshl_b32 s70, 1, s{t3}
            '''.format(t=sT, t3=sT3, l=vL, o=vO))

        def stores():
            r = []
            for k in range(4):
                pre = 's_add_u32 s71, s%d, s70\n' % sDst if k == 2 else ''
                r.append(pre + 'buffer_store_dwordx4 %s, v%d, s[4:7], s%d offen offset:%d sc1' % (vr(OUT + 4 * k, 4), vO, 71 if k >> 1 else sDst, (k & 1) * 1024))
            r[-1] += '\ns_add_u32 s%d, s%d, s%d' % (sDst, sDst, sStr)
            return r
        p('L_q_loop%s:' % tag)
        p('s_waitcnt vmcnt(0)\ns_barrier')
        rd = lambda ks, T: 'ds_read_b128 %s, v%d offset:%d' % (vr(H + 8 * (ks % 3) + 4 * T, 4), vT, ks * 2048 + T * 1024)
        for ks in (0, 1):
            for T in (0, 1): p(rd(ks, T))
        sl = stores(); dl = dma_list()
        for ks in range(20):
            for T in (0, 1):
                for t in range(4):
                    a = vr(ACC + 16 * T + 4 * t, 4); h = vr(H + 8 * (ks % 3) + 4 * T, 4); w = wreg(16 * ks + 4 * t)
                    p('v_mfma_f32_16x16x32_bf16 %s, %s, %s, %s' % (a, h if isv else w, w if isv else h, a if ks else '0'))
                    if t == 0 and ks + 2 < 20: p(rd(ks + 2, T))
                    if t == 2 and sl:
                        l = p.newlabel('L_qs'); p('s_cmp_eq_u32 s%d, 0\ns_cbranch_scc1 %s' % (sN, l)); p(sl.pop(0)); p(l + ':')
                    elif t == 2 and T == 0 and dl: p(dl.pop(0))
                    elif t == 2 and T == 0 and ks == 13:
                        l = p.newlabel('L_qn')
                        if not isv: p('s_cmp_ge_u32 s%d, 4\ns_cbranch_scc1 %s' % (sY, l))
                        p('buffer_store_dwordx4 v[80:83], v%d, s[4:7], s%d offen sc1\ns_add_u32 s%d, s%d, 0x80000\n%s:' % (vL16, sSn, sSn, sSn, l))
            if ks == 11:
                assert not dl
                p('s_waitcnt vmcnt(10)'); flag()
        p('s_add_u32 s%d, s%d, 1\nv_xor_b32 v%d, 0x10000, v%d' % (sN, sN, vT, vT))
        for k in range(4):
            o = OUT + 4 * k
            if isv:
                for T in (0, 1):
                    for hh in (0, 1):
                        a = ACC + 16 * T + 4 * k + 2 * hh
                        p('v_cvt_pk_bf16_f32 v%d, v%d, v%d' % (o + 2 * T + hh, a, a + 1))
            else:
                hh, T = k >> 1, k & 1
                for i in range(4):
                    a = ACC + 16 * T + 8 * hh + i
                    p('v_cvt_pk_bf16_f32 v%d, v%d, v%d' % (o + i, a, a + 4))
        p('s_cmp_lt_u32 s%d, 16\ns_cbranch_scc1 L_q_loop%s' % (sN, tag))
        for l in stores(): p(l)
        if not isv: p('s_branch L_q_done')
    p('L_q_done:')
    p('s_waitcnt vmcnt(0)')
    flag()


def gen_worker(p, cfg):
    srds = ((sX, 0, 2621440), (sC, 88, 1280), (sWm, 96, 4915200), (sWo, 40, 5242880), (sWg, 64, 2211840), (sWu, 72, 2211840),
            (sWd, 80, 2211840), (sOut, 104, 2621440))
    for sr, off, size in srds: p('s_load_dwordx2 s[%d:%d], s[0:1], %d' % (sr, sr + 1, off))
    p('s_load_dwordx4 s[60:63], s[0:1], 16\ns_load_dwordx2 s[64:65], s[0:1], 32')
    p('''
    s_sub_u32 s{y}, s14, 2
    s_lshl_b32 s{wi}, s{y}, 5
    s_add_u32 s{wi}, s{wi}, s13
    s_mov_b32 s{b}, 1000000
    s_mov_b32 s{s0}, 0x05040100
    s_mov_b32 s{s1}, 0x07060302
    v_lshlrev_b32 v{l16}, 4, v{l}
    s_waitcnt lgkmcnt(0)
    s_cmp_ge_u32 s{y}, 2
    s_cselect_b64 s[{w}:{w1}], s[64:65], s[62:63]
    s_cmp_ge_u32 s{y}, 4
    s_cselect_b64 s[{w}:{w1}], s[60:61], s[{w}:{w1}]
    '''.format(y=sY, wi=sWi, b=sBud, s0=sSel0, s1=sSel1, l16=vL16, l=vL, w=sW, w1=sW + 1))
    for sr, off, size in srds + ((sW, 0, 5242880),): p('s_mov_b32 s%d, %d\ns_mov_b32 s%d, 0x20000' % (sr + 2, size, sr + 3))
    p('s_mov_b64 s[68:69], s[60:61]\ns_mov_b32 s70, 5242880\ns_mov_b32 s71, 0x20000')
    p('s_cmp_lt_u32 s%d, 4\ns_cbranch_scc1 L_w_kv' % sY)
    XR = 40

    def xloads():
        p('''
        v_and_b32 v2, 7, v{l}
        v_mul_u32_u24 v2, 1280, v2
        v_lshrrev_b32 v3, 3, v{l}
        v_lshl_add_u32 v2, v3, 4, v2
        s_sub_u32 s{t}, s{wi}, 128
        s_lshl_b32 s{t}, s{t}, 2
        s_add_u32 s{t}, s{t}, s12
        s_mul_i32 s{t}, s{t}, 10240
        '''.format(l=vL, t=sT, wi=sWi))
        for i in range(10): p('buffer_load_dwordx4 %s, v2, %s, s%d offen offset:%d' % (vr(XR + 4 * i, 4), srd(sX), sT, 128 * i))
    p('s_sub_u32 s%d, s%d, 4\ns_cmp_ge_u32 s13, 20\ns_cbranch_scc1 L_w_nomod' % (sT3, sY))
    gen_mod_loads(p, 80, 120)
    xloads()
    gen_mod_compute(p, 80, 120, 16)
    wait_count(p, DBG_GO, 1, sBud)
    gen_mod_store(p, 16)
    p('s_branch L_w_ln\nL_w_nomod:')
    xloads()
    wait_count(p, DBG_GO, 1, sBud)
    p('L_w_ln:')
    EV(p, cfg, 3)
    gen_ln1a(p, XR)
    gen_ln1b(p, XR)
    EV(p, cfg, 4)
    wait_count(p, DBG_PAR, 1, sBud, mask=7, keep=sT2)
    p('''
    s_and_b32 s{t2}, s{t2}, 0x2000
    s_sub_u32 s{t}, s{wi}, 128
    s_lshl_b32 s{t}, s{t}, 15
    s_add_u32 s{t}, s{t}, s{t2}
    s_lshr_b32 s{t2}, s12, 1
    s_lshl_b32 s{t2}, s{t2}, 14
    s_add_u32 s{t}, s{t}, s{t2}
    s_and_b32 s{t2}, s12, 1
    s_mul_i32 s{t2}, s{t2}, 3072
    s_add_u32 s{t}, s{t}, s{t2}
    s_add_u32 s{t}, s{t}, {rem}
    v_mov_b64 v[4:5], -1
    v_mov_b64 v[6:7], -1
    buffer_store_dwordx4 v[4:7], v{l16}, s[4:7], s{t} offen sc1
    buffer_store_dwordx4 v[4:7], v{l16}, s[4:7], s{t} offen offset:1024 sc1
    buffer_store_dwordx4 v[4:7], v{l16}, s[4:7], s{t} offen offset:2048 sc1
    '''.format(t=sT, t2=sT2, wi=sWi, rem=WS_REM, l16=vL16))
    arrive(p, DBG_CHAIN)
    p('s_branch L_w_w\nL_w_kv:')
    gen_clear_ctrl(p)
    gen_probe(p, cfg)
    if cfg.get('pf'):
        p('s_lshl_b32 s{t}, s{wi}, 2\ns_add_u32 s{t}, s{t}, s12\ns_mul_i32 s{t}, s{t}, 10240\nv_lshlrev_b32 v4, 7, v{l}\nv_add_u32 v4, s{t}, v4\nv_add_u32 v5, 2048, v4'.format(t=sT, wi=sWi, l=vL))
        for n, m in enumerate(cfg['pf']):
            for k in (0, 1): p('buffer_load_dword v6, v%d, %s, 0 offen' % (4 + k, srd({'o': sWo, 'q': 68}[m])))
    p('L_w_w:')
    EV(p, cfg, 5)
    gen_qkv_w(p)
    EV(p, cfg, 6)
    wait_count(p, DBG_GO, 1, sBud)
    EV(p, cfg, 7)
    EV(p, cfg, 102, clk=True)
    gen_qkv_loop(p, cfg)
    EV(p, cfg, 9)
    EV(p, cfg, 103, clk=True)
    p('s_cmp_ge_u32 s%d, 4\ns_cbranch_scc1 L_w_post\ns_cmp_ge_u32 s13, 20\ns_cbranch_scc1 L_w_post' % sY)
    p('s_add_u32 s%d, s%d, 2' % (sT3, sY))
    gen_mod_loads(p, 80, 120)
    gen_mod_compute(p, 80, 120, 16)
    gen_mod_store(p, 16)
    p('L_w_post:')
    if cfg.get('nopost'): p('s_branch L_end')
    else:
        import post
        post.gen_post(p, cfg)
```

```python
import sys
from asmgen import Prog
from layout import *
import chain2 as chain, worker
NAME = 'adaLN_cond__memory_aug_recurrent_mem_tr__glu_gated_reglu__prompt'
def body(cfg):
    p = Prog()
    p('''
    s_cmp_ge_u32 s2, 256
    s_cbranch_scc1 L_exit
    s_load_dwordx4 s[16:19], s[0:1], 112
    EV0
    s_getreg_b32 s14, hwreg(HW_REG_XCC_ID)
    s_and_b32 s14, s14, 7
    s_lshl_b32 s14, s14, 2
    s_lshr_b32 s14, XMAP, s14
    s_and_b32 s14, s14, 7
    v_lshrrev_b32 v1, 6, v0
    v_readfirstlane_b32 s12, v1
    v_and_b32 v0, 63, v0
    ; ticket word: dies 0,1 in the first line of d_debug, the others in the second
    s_lshl_b32 s15, s14, 6
    s_lshl_b32 s20, s14, 2
    s_add_u32 s20, s20, 120
    s_cmp_lt_u32 s14, 2
    s_cselect_b32 s15, s15, s20
    v_mov_b32 v2, 0
    v_mov_b32 v3, 1
    s_waitcnt lgkmcnt(0)
    s_mov_b32 s4, s18
    s_mov_b32 s5, s19
    s_mov_b32 s6, %d
    s_mov_b32 s7, 0x20000
    s_mov_b32 s8, s16
    s_mov_b32 s9, s17
    s_mov_b32 s10, 256
    s_mov_b32 s11, 0x20000
    s_cmp_lg_u32 s12, 0
    s_cbranch_scc1 L_noticket
    s_mov_b64 exec, 1
    buffer_atomic_add v3, v2, s[8:11], s15 offen sc0
    s_waitcnt vmcnt(0)
    ds_write_b32 v2, v3
    s_waitcnt lgkmcnt(0)
    s_mov_b64 exec, -1
    L_noticket:
    s_barrier
    ds_read_b32 v3, v2
    s_waitcnt lgkmcnt(0)
    v_readfirstlane_b32 s13, v3
    s_cmp_ge_u32 s13, 32
    s_cbranch_scc1 L_end
    s_barrier
    '''.replace('XMAP', cfg.get('xmap', '0x76541023')).replace('EV0', 's_memrealtime s[96:97]' if cfg.get('ev') else '') % WS_SIZE)
    if cfg.get('ev'):
        EV(p, cfg, 1)
        p('v_mov_b32 v2, s96\ns_sub_u32 s94, s94, 4\nbuffer_store_dword v2, v3, s[4:7], s94 offen')
    EV(p, cfg, 100, clk=True)
    p('s_cmp_ge_u32 s14, 2\ns_cbranch_scc0 L_chain')
    worker.gen_worker(p, cfg)
    p('L_end:\ns_waitcnt vmcnt(0) lgkmcnt(0)')
    if cfg.get('wb'): p('s_cmp_lg_u32 s12, 0\ns_cbranch_scc1 L_nowb\ns_cmp_lg_u32 s13, 0\ns_cbranch_scc1 L_nowb\nbuffer_wbl2 sc1\ns_waitcnt vmcnt(0)\nL_nowb:')
    EV(p, cfg, 2)
    EV(p, cfg, 101, clk=True)
    p('L_exit:\ns_endpgm')
    p('L_chain:')
    cfg.setdefault('tnames', [])
    c = dict(cfg); c['flags'] = True
    def go(p):
        EV(p, cfg, 3, 26)
        worker.wait_count(p, worker.DBG_CHAIN, 128, chain.sBudget, 26, 40)
        worker.wait_count(p, worker.DBG_PAR, 1, chain.sBudget, 26, 40, mask=7, keep=81)
        EV(p, cfg, 4, 26)
    c['wait_go'] = go
    c['arrive'] = lambda p: worker.arrive(p, worker.DBG_CHAIN, False, 10)
    chain.gen_chain(p, c)
    return p.finalize(cfg.get('verbose', False))
def full(cfg):
    ref = open('cdna_kernels/%s.s.ref' % NAME).read().split('\n')
    head = [l for l in ref if l.startswith(';') and '@launch' not in l and 'Override launch' not in l and 'grid=ceil' not in l]
    out = '\n'.join(head) + '\n; @launch grid=(256,1,1) block=(256,1,1) lds=163840\n'
    out += '''.amdgcn_target "amdgcn-amd-amdhsa--gfx950"
.text
.globl {n}_kernel
.p2align 8
.type {n}_kernel,@function
{n}_kernel:
'''.format(n=NAME)
    out += body(cfg)
    out += '''.section .rodata,"a"
.p2align 6
.amdhsa_kernel {n}_kernel
  .amdhsa_next_free_vgpr 512
  .amdhsa_next_free_sgpr 102
  .amdhsa_accum_offset 256
  .amdhsa_group_segment_fixed_size 0
  .amdhsa_kernarg_size 128
  .amdhsa_user_sgpr_count 2
  .amdhsa_user_sgpr_kernarg_segment_ptr 1
  .amdhsa_system_sgpr_workgroup_id_x 1
  .amdhsa_float_denorm_mode_32 3
.end_amdhsa_kernel
'''.format(n=NAME)
    return out
if __name__ == '__main__':
    cfg = eval(sys.argv[1]) if len(sys.argv) > 1 else {}
    cfg['verbose'] = True
    dst = sys.argv[2] if len(sys.argv) > 2 else 'cdna_kernels/%s.s' % NAME
    open(dst, 'w').write(full(cfg))
```

```python
import sys
from asmgen import Prog
from layout import *
import chain2 as chain, worker
NAME = 'adaLN_cond__memory_aug_recurrent_mem_tr__glu_gated_reglu__prompt'
def body(cfg):
    p = Prog()
    p('''
    s_cmp_ge_u32 s2, 256
    s_cbranch_scc1 L_exit
    s_load_dwordx4 s[16:19], s[0:1], 112
    EV0
    s_getreg_b32 s14, hwreg(HW_REG_XCC_ID)
    s_and_b32 s14, s14, 7
    s_lshl_b32 s14, s14, 2
    s_lshr_b32 s14, XMAP, s14
    s_and_b32 s14, s14, 7
    v_lshrrev_b32 v1, 6, v0
    v_readfirstlane_b32 s12, v1
    v_and_b32 v0, 63, v0
    ; ticket word: dies 0,1 in the first line of d_debug, the others in the second
    s_lshl_b32 s15, s14, 6
    s_lshl_b32 s20, s14, 2
    s_add_u32 s20, s20, 120
    s_cmp_lt_u32 s14, 2
    s_cselect_b32 s15, s15, s20
    v_mov_b32 v2, 0
    v_mov_b32 v3, 1
    s_waitcnt lgkmcnt(0)
    s_mov_b32 s4, s18
    s_mov_b32 s5, s19
    s_mov_b32 s6, %d
    s_mov_b32 s7, 0x20000
    s_mov_b32 s8, s16
    s_mov_b32 s9, s17
    s_mov_b32 s10, 256
    s_mov_b32 s11, 0x20000
    s_cmp_lg_u32 s12, 0
    s_cbranch_scc1 L_noticket
    s_mov_b64 exec, 1
    buffer_atomic_add v3, v2, s[8:11], s15 offen sc0
    s_waitcnt vmcnt(0)
    ds_write_b32 v2, v3
    s_waitcnt lgkmcnt(0)
    s_mov_b64 exec, -1
    L_noticket:
    s_barrier
    ds_read_b32 v3, v2
    s_waitcnt lgkmcnt(0)
    v_readfirstlane_b32 s13, v3
    s_cmp_ge_u32 s13, 32
    s_cbranch_scc1 L_end
    s_barrier
    '''.replace('XMAP', cfg.get('xmap', '0x76541023')).replace('EV0', 's_memrealtime s[96:97]' if cfg.get('ev') else ('s_memrealtime s[98:99]\ns_memrealtime s[100:101]' if cfg.get('enc') else '')) % WS_SIZE)
    if cfg.get('ev'):
        EV(p, cfg, 1)
        p('v_mov_b32 v2, s96\ns_sub_u32 s94, s94, 4\nbuffer_store_dword v2, v3, s[4:7], s94 offen')
    EV(p, cfg, 100, clk=True)
    p('s_cmp_ge_u32 s14, 2\ns_cbranch_scc0 L_chain')
    worker.gen_worker(p, cfg)
    p('L_end:\ns_waitcnt vmcnt(0) lgkmcnt(0)')
    if cfg.get('wb'): p('s_cmp_lg_u32 s12, 0\ns_cbranch_scc1 L_nowb\ns_cmp_lg_u32 s13, 0\ns_cbranch_scc1 L_nowb\nbuffer_wbl2 sc1\ns_waitcnt vmcnt(0)\nL_nowb:')
    EV(p, cfg, 2)
    EV(p, cfg, 101, clk=True)
    if cfg.get('enc'):
        p('''
        s_cmp_lg_u32 s14, %d
        s_cbranch_scc1 L_exit
        s_sub_u32 s100, s100, s98
        s_lshl_b32 s100, s100, 1
        s_add_u32 s100, s100, 30000
        L_enc:
        s_sleep 1
        s_memrealtime s[94:95]
        s_waitcnt lgkmcnt(0)
        s_sub_u32 s94, s94, s98
        s_cmp_lt_u32 s94, s100
        s_cbranch_scc1 L_enc
        ''' % cfg['enc'][0])
    p('L_exit:\ns_endpgm')
    p('L_chain:')
    cfg.setdefault('tnames', [])
    c = dict(cfg); c['flags'] = True
    def go(p):
        EV(p, cfg, 3, 26)
        worker.wait_count(p, worker.DBG_CHAIN, 128, chain.sBudget, 26, 40)
        worker.wait_count(p, worker.DBG_PAR, 1, chain.sBudget, 26, 40, mask=7, keep=81)
        EV(p, cfg, 4, 26)
    c['wait_go'] = go
    c['arrive'] = lambda p: worker.arrive(p, worker.DBG_CHAIN, False, 10)
    chain.gen_chain(p, c)
    return p.finalize(cfg.get('verbose', False))
def full(cfg):
    ref = open('cdna_kernels/%s.s.ref' % NAME).read().split('\n')
    head = [l for l in ref if l.startswith(';') and '@launch' not in l and 'Override launch' not in l and 'grid=ceil' not in l]
    out = '\n'.join(head) + '\n; @launch grid=(256,1,1) block=(256,1,1) lds=163840\n'
    out += '''.amdgcn_target "amdgcn-amd-amdhsa--gfx950"
.text
.globl {n}_kernel
.p2align 8
.type {n}_kernel,@function
{n}_kernel:
'''.format(n=NAME)
    out += body(cfg)
    out += '''.section .rodata,"a"
.p2align 6
.amdhsa_kernel {n}_kernel
  .amdhsa_next_free_vgpr 512
  .amdhsa_next_free_sgpr 102
  .amdhsa_accum_offset 256
  .amdhsa_group_segment_fixed_size 0
  .amdhsa_kernarg_size 128
  .amdhsa_user_sgpr_count 2
  .amdhsa_user_sgpr_kernarg_segment_ptr 1
  .amdhsa_system_sgpr_workgroup_id_x 1
  .amdhsa_float_denorm_mode_32 3
.end_amdhsa_kernel
'''.format(n=NAME)
    return out
if __name__ == '__main__':
    cfg = eval(sys.argv[1]) if len(sys.argv) > 1 else {}
    cfg['verbose'] = True
    dst = sys.argv[2] if len(sys.argv) > 2 else 'cdna_kernels/%s.s' % NAME
    open(dst, 'w').write(full(cfg))
```
